```python
import torch

def _softmax(x, axis=-1):
    return torch.softmax(x, dim=axis)
def _gelu(x):
    return torch.nn.functional.gelu(x, approximate="tanh")
def _silu(x):
    return torch.nn.functional.silu(x)
def _sigmoid(x):
    return torch.sigmoid(x)
def _layernorm(x, axis=-1, eps=1e-5):
    m = x.mean(dim=axis, keepdim=True)
    v = x.var(dim=axis, keepdim=True, unbiased=False)
    return (x - m) / torch.sqrt(v + eps)
def _scatter_add(tgt, idx, src, axis=0):
    return tgt.clone().index_add_(axis, idx, src)
def _segment_sum(src, seg, n):
    out = torch.zeros((n,) + src.shape[1:], dtype=src.dtype)
    return out.index_add_(0, seg, src)
def _pad(x, pw):
    flat = tuple(v for pair in reversed(pw) for v in pair)
    return torch.nn.functional.pad(x, flat)

kernel_name = 'sequential_preLN__linear_kernel_hedgehog__dense_activation_relu__prompt'

def setup_inputs():

    _w = (lambda a: (lambda t: t.to(torch.bfloat16) if t.is_floating_point() else t)(torch.as_tensor(a)))
    def _A_setup():
        B, S, D, H = 1, 2048, 640, 32
        Dh = D // H
        return {
            "x": _w((lambda *s: torch.randn(*s, dtype=torch.bfloat16) * 0.05)(B, S, D)),
            "wqkv": _w((lambda *s: torch.randn(*s, dtype=torch.bfloat16) * 0.2)(D, 3 * D)),
            "w_phi": _w((lambda *s: torch.randn(*s, dtype=torch.bfloat16) * 0.2)(H, Dh, Dh) * (Dh ** -0.5)),
            "wo": _w((lambda *s: torch.randn(*s, dtype=torch.bfloat16) * 0.05)(D, D)),
        }
    _A_in = _A_setup()

    def _B_setup():
        B, S, D, Dff = 1, 2048, 640, 1728
        return {
            "x": _w((lambda *s: torch.randn(*s, dtype=torch.bfloat16) * 0.05)(B, S, D)),
            "w1": _w((lambda *s: torch.randn(*s, dtype=torch.bfloat16) * 0.05)(D, Dff)),
            "w2": _w((lambda *s: torch.randn(*s, dtype=torch.bfloat16) * 0.05)(Dff, D)),
        }
    _B_in = _B_setup()

    return {
        "A_x": _A_in["x"],
        "A_wqkv": _A_in["wqkv"],
        "A_w_phi": _A_in["w_phi"],
        "A_wo": _A_in["wo"],
        "B_x": _B_in["x"],
        "B_w1": _B_in["w1"],
        "B_w2": _B_in["w2"],
    }

def reference(A_x, A_wqkv, A_w_phi, A_wo, B_x, B_w1, B_w2):
    def _A_ref(x, wqkv, w_phi, wo):
        B, S, D = x.shape
        H = 32; Dh = D // H
        qkv = (lambda x, *d: x.permute(*d))((x @ wqkv).reshape(B, S, 3, H, Dh), 2, 0, 3, 1, 4)
        q, k, v = qkv[0], qkv[1], qkv[2]
        pq = torch.einsum("bhsd,hdf->bhsf", q, w_phi)
        pk = torch.einsum("bhsd,hdf->bhsf", k, w_phi)
        phi_q = torch.concatenate([_softmax(pq, axis=-1), _softmax(-pq, axis=-1)], axis=-1)
        phi_k = torch.concatenate([_softmax(pk, axis=-1), _softmax(-pk, axis=-1)], axis=-1)
        kv = torch.einsum("bhsf,bhsd->bhfd", phi_k, v)
        z  = torch.einsum("bhsf->bhf", phi_k)
        num = torch.einsum("bhqf,bhfd->bhqd", phi_q, kv)
        den = torch.einsum("bhqf,bhf->bhq", phi_q, z)[..., None] + 1e-6
        o = num / den
        return (lambda x, *d: x.permute(*d))(o, 0, 2, 1, 3).reshape(B, S, D) @ wo

    def _B_ref(x, w1, w2):
        h = torch.einsum("bsd,df->bsf", x, w1)
        zero = torch.zeros_like(h)
        h = torch.maximum(h, zero)
        return torch.einsum("bsf,fd->bsd", h, w2)

    x = A_x
    h = x + _A_ref(_layernorm(x, axis=-1), A_wqkv, A_w_phi, A_wo)
    h2 = h + _B_ref(_layernorm(h, axis=-1), B_w1, B_w2)
    return h2
```

```python
import re

class R:
    __slots__ = ("k", "i", "n")
    def __init__(s, k, i, n=1):
        s.k, s.i, s.n = k, i, n
    def __str__(s):
        if s.k in ("vcc", "exec", "m0", "scc"): return s.k
        return f"{s.k}{s.i}" if s.n == 1 else f"{s.k}[{s.i}:{s.i+s.n-1}]"
    __repr__ = __str__
    def __getitem__(s, x):
        if isinstance(x, slice):
            a = x.start or 0; b = x.stop if x.stop is not None else s.n
            assert 0 <= a < b <= s.n, (s, x)
            return R(s.k, s.i + a, b - a)
        assert 0 <= x < s.n, (s, x)
        return R(s.k, s.i + x, 1)
    def units(s):
        if s.k in ("vcc", "exec", "m0", "scc"): return [(s.k, 0)]
        return [(s.k, s.i + q) for q in range(s.n)]
def V(i, n=1): return R("v", i, n)
def A(i, n=1): return R("a", i, n)
def S(i, n=1): return R("s", i, n)
VCC = R("vcc", 0); EXEC = R("exec", 0); M0 = R("m0", 0)

class Neg:
    def __init__(s, r): s.r = r
    def __str__(s): return "-" + str(s.r)

TRANS = ("v_exp_f32", "v_log_f32", "v_rcp_f32", "v_rsq_f32", "v_sqrt_f32")

class Alloc:
    def __init__(s, k, lo, hi):
        s.k = k; s.free = [True] * hi; s.lo = lo; s.hi = hi; s.hw = 0
        for i in range(lo): s.free[i] = False
    def get(s, n=1, align=None):
        if align is None: align = 1 if n == 1 else (2 if s.k != "s" else (4 if n >= 4 else 2))
        i = (s.lo + align - 1) // align * align
        while i + n <= s.hi:
            if all(s.free[i:i+n]):
                for q in range(i, i+n): s.free[q] = False
                s.hw = max(s.hw, i + n)
                return R(s.k, i, n)
            i += align
        raise Exception(f"out of {s.k} regs for {n}")
    def put(s, *rs):
        for r in rs:
            if isinstance(r, (list, tuple)): s.put(*r); continue
            assert r.k == s.k
            for q in range(r.i, r.i + r.n):
                assert not s.free[q], f"double free {r}"
                s.free[q] = True

class Emit:
    def __init__(s):
        s.L = []; s.slot = 0
        s.lastw = {}
        s.lastc = {}
        s.lastst = {}
        s.vm = 0; s.lg = 0; s.lg_smem = False
        s.vm_done = 0; s.lg_done = 0
        s.nlab = 0; s.nops = 0
        s.v = Alloc("v", 1, 256); s.a = Alloc("a", 0, 256); s.s = Alloc("s", 4, 100)
    def raw(s, t): s.L.append(t)
    def comment(s, t): s.L.append("    ; " + t)
    def label(s, name):
        s.L.append(name + ":")
    def newlabel(s, p="L"):
        s.nlab += 1; return f"{p}_{s.nlab}"
    def nop(s, n):
        while n > 0:
            k = min(n, 16); s.L.append(f"    s_nop {k-1}"); s.slot += k; n -= k; s.nops += 1
    def _regs(s, ops):
        u = []
        for o in ops:
            if isinstance(o, Neg): o = o.r
            if isinstance(o, R): u += o.units()
        return u
    def _need(s, kind, op, rd, wr, srcC=None, srcAB=(), lanesel=()):
        need = 0
        def req(pslot, ws):
            nonlocal need
            need = max(need, ws - (s.slot - pslot - 1))
        isvalu = kind in ("valu", "trans", "perm", "dpp", "rl", "dot")
        for u in rd:
            w = s.lastw.get(u)
            if not w: continue
            ps, pk, pt = w
            pvalu = pk in ("valu", "trans", "perm", "dpp", "rl", "dot")
            if u[0] in ("v", "a"):
                if pvalu:
                    if kind == "mfma": req(ps, 2)
                    if kind in ("perm", "dpp"): req(ps, 2)
                    if kind == "rl": req(ps, 1)
                    if pk == "trans" and isvalu and kind != "trans": req(ps, 1)
                    if pk == "trans" and kind in ("vmem", "ds"): req(ps, 1)
                    if pk == "dot":
                        if kind == "dot" and pt == op and srcC is not None and u in srcC and u not in srcAB: pass
                        else: req(ps, 3)
                if pk == "mfma":
                    if kind == "mfma":
                        if u in srcAB: req(ps, 8)
                        elif srcC is not None and u in srcC:
                            if tuple(srcC) != pt: req(ps, 6)
                    else: req(ps, 8)
            else:
                if pvalu:
                    if isvalu or kind == "mfma": req(ps, 4 if u in lanesel else 2)
                    if kind == "vmem": req(ps, 5)
                    if kind in ("salu", "smem"): req(ps, 1)
                if u[0] == "m0" and pk == "salu" and kind in ("vmem", "ds"): req(ps, 1)
        for u in wr:
            w = s.lastw.get(u)
            if w and u[0] in ("v", "a"):
                ps, pk, pt = w
                if pk == "mfma" and kind != "mfma": req(ps, 8)
                if pk == "mfma" and kind == "mfma" and not (srcC is not None and tuple(srcC) == pt): req(ps, 6)
                if pk == "dot" and not (kind == "dot" and pt == op): req(ps, 3)
            if isvalu and u in s.lastc: req(s.lastc[u], 3)
            if u in s.lastst: req(s.lastst[u], 2)
        return max(need, 0)
    def ins(s, kind, op, text, rd, wr, srcC=None, srcAB=(), lanesel=(), stdata=None):
        rd = s._regs(rd); wr = s._regs(wr)
        sc = s._regs([srcC]) if srcC is not None else None
        ab = s._regs(srcAB); ls = s._regs(lanesel)
        n = s._need(kind, op, rd, wr, sc, ab, ls)
        if n: s.nop(n)
        s.L.append("    " + text)
        for u in wr:
            s.lastw[u] = (s.slot, kind, tuple(wr) if kind == "mfma" else op)
        if kind == "mfma" and sc:
            for u in sc: s.lastc[u] = s.slot
        if stdata is not None:
            for u in s._regs([stdata]): s.lastst[u] = s.slot
        s.slot += 1
    def valu(s, op, dst, *src, mods="", rw=False):
        base = op.replace("_e64", "").replace("_e32", "")
        kind = "trans" if base in TRANS else "valu"
        if base.startswith("v_dot"): kind = "dot"
        if "row_" in mods or "quad_perm" in mods: kind = "dpp"
        rd = list(src); wr = [dst]
        if rw or base in ("v_fmac_f32", "v_dot2c_f32_bf16") or kind == "dpp": rd.append(dst)
        if base == "v_cndmask_b32" and len(src) == 2: rd.append(VCC)
        txt = f"{op} {dst}, " + ", ".join(str(x) for x in src)
        if base == "v_cndmask_b32" and len(src) == 2: txt += ", vcc"
        if mods: txt += " " + mods
        if kind == "dot":
            s.ins(kind, base, txt, rd, wr, srcC=src[2] if len(src) > 2 and isinstance(src[2], R) else dst, srcAB=[x for x in src[:2]])
        else:
            s.ins(kind, base, txt, rd, wr)
    def perm(s, op, a, b):
        s.ins("perm", op, f"{op} {a}, {b}", [a, b], [a, b])
    def rfl(s, sd, v):
        s.ins("rl", "v_readfirstlane_b32", f"v_readfirstlane_b32 {sd}, {v}", [v], [sd])
    def mfma(s, d, a, b, c=None):
        if c is None: c = d
        s.ins("mfma", "mfma", f"v_mfma_f32_16x16x32_bf16 {d}, {a}, {b}, {c}", [a, b, c], [d], srcC=c if isinstance(c, R) else None, srcAB=[a, b])
    def salu(s, op, dst, *src):
        wr = [dst] if dst is not None else []
        ops = ([dst] if dst is not None else []) + list(src)
        rd = list(src)
        if op in ("s_addk_i32", "s_mulk_i32"): rd.append(dst)
        if "saveexec" in op: wr.append(EXEC); rd.append(EXEC)
        s.ins("salu", op, f"{op} " + ", ".join(str(x) for x in ops), rd, wr)
    def scmp(s, op, a, b): s.ins("salu", op, f"{op} {a}, {b}", [a, b], [])
    def branch(s, op, lab): s.ins("salu", op, f"{op} {lab}", [], [])
    def misc(s, t): s.ins("salu", t.split()[0], t, [], [])
    def barrier(s): s.misc("s_barrier")
    def smem(s, op, dst, base, off):
        s.ins("smem", op, f"{op} {dst}, {base}, {off}", [base], [dst]); s.lg += 1; s.lg_smem = True
    def memtime(s, dst, real=True):
        op = "s_memrealtime" if real else "s_memtime"
        s.ins("smem", op, f"{op} {dst}", [], [dst]); s.lg += 1; s.lg_smem = True
    def bload(s, dst, voff, srd, soff=0, off=0, fl="", op=None):
        if op is None: op = {1: "buffer_load_dword", 2: "buffer_load_dwordx2", 3: "buffer_load_dwordx3", 4: "buffer_load_dwordx4"}[dst.n]
        assert 0 <= off < 4096
        t = f"{op} {dst}, {voff}, {srd}, {soff} offen" + (f" offset:{off}" if off else "") + (" " + fl if fl else "")
        s.ins("vmem", op, t, [voff, srd, soff], [dst]); s.vm += 1; return s.vm
    def bdma(s, voff, srd, soff=0, off=0, fl=""):
        assert 0 <= off < 4096
        t = f"buffer_load_dwordx4 {voff}, {srd}, {soff} offen" + (f" offset:{off}" if off else "") + (" " + fl if fl else "") + " lds"
        s.ins("vmem", "dma", t, [voff, srd, soff, M0], []); s.vm += 1; return s.vm
    def bstore(s, src, voff, srd, soff=0, off=0, fl="", op=None):
        if op is None: op = {1: "buffer_store_dword", 2: "buffer_store_dwordx2", 4: "buffer_store_dwordx4"}[src.n]
        assert 0 <= off < 4096
        t = f"{op} {src}, {voff}, {srd}, {soff} offen" + (f" offset:{off}" if off else "") + (" " + fl if fl else "")
        s.ins("vmem", op, t, [src, voff, srd, soff], [], stdata=src if src.n >= 3 else None); s.vm += 1; return s.vm
    def gload(s, dst, voff, sbase, off=0, fl=""):
        op = {1: "global_load_dword", 2: "global_load_dwordx2", 4: "global_load_dwordx4"}[dst.n]
        t = f"{op} {dst}, {voff}, {sbase}" + (f" offset:{off}" if off else "") + (" " + fl if fl else "")
        s.ins("vmem", op, t, [voff, sbase], [dst]); s.vm += 1; return s.vm
    def dsr(s, dst, addr, off=0, op=None):
        if op is None: op = {1: "ds_read_b32", 2: "ds_read_b64", 4: "ds_read_b128"}[dst.n]
        assert 0 <= off < 65536, off
        s.ins("ds", op, f"{op} {dst}, {addr}" + (f" offset:{off}" if off else ""), [addr], [dst]); s.lg += 1; return s.lg
    def dstr(s, dst, addr, off=0): return s.dsr(dst, addr, off, op="ds_read_b64_tr_b16")
    def dsw(s, addr, src, off=0):
        op = {1: "ds_write_b32", 2: "ds_write_b64", 4: "ds_write_b128"}[src.n]
        assert 0 <= off < 65536
        s.ins("ds", op, f"{op} {addr}, {src}" + (f" offset:{off}" if off else ""), [addr, src], []); s.lg += 1; return s.lg
    def wait(s, vm=None, lg=None):
        parts = []
        if vm is not None:
            if vm == "all": vm = s.vm
            if vm > s.vm_done:
                n = s.vm - vm
                parts.append(f"vmcnt({min(n,63)})")
                s.vm_done = vm
        if lg is not None:
            if lg == "all" or s.lg_smem: lg = s.lg
            if lg > s.lg_done:
                n = s.lg - lg
                parts.append(f"lgkmcnt({min(n,15)})")
                s.lg_done = lg
                if n == 0: s.lg_smem = False
        if parts: s.misc("s_waitcnt " + " ".join(parts))
    def forget(s):
        pass
    def text(s): return "\n".join(s.L)
```

```python
import sys
from emit import *

NAME = "sequential_preLN__linear_kernel_hedgehog__dense_activation_relu__prompt"
DIAG = int(sys.argv[2]) if len(sys.argv) > 2 else 0
OPT = dict(kv.split("=") for kv in sys.argv[3:])
def opt(k, d): return type(d)(OPT.get(k, d))

EPOCH = 0; FLAGS = 0x10000; KVACC = 0x40000; CS1 = 0x60000; ST2 = 0x70000; STAMP = 0x90000
XN = 0x100000; WQKV = 0x400000; WO = 0x700000; W1 = 0x800000; W2 = 0xB00000
OP = 0xE00000; HP = 0x1100000; H1 = 0x1400000
F_P0, F_PK, F_KV, F_O, F_H, F_H1 = range(6)
KB = 1024
QREG = 100 * KB
SCRW = QREG; SCR2 = 0x1C000; LNX = 0x24000
ROWB = 296
LOG2E = "0x3fb8aa3b"
OOB = "0x40000000"
SPIN = 200000

e = Emit()
v = e.v; a = e.a; sg = e.s
PTR = S(4, 20)
for q in range(4, 24): sg.free[q] = False
pX, pWQKV, pWPHI, pWO, pBX, pW1, pW2, pOUT, pDBG, pWS = [S(4 + 2 * q, 2) for q in range(10)]
WS = sg.get(4); XS = sg.get(4); QS = sg.get(4); PS = sg.get(4); K2 = sg.get(4); OS = sg.get(4)
TAG = sg.get(2); sI = sg.get(); sJ = sg.get(); sW = sg.get()
sT = [sg.get() for _ in range(8)]
sEX = sg.get(2); sSPIN = sg.get()
stamps = []
sST = sg.get(2); vST = v.get()
def setexec(m):
    if m in (-1, 1) or (0 <= m < 2**31): e.salu("s_mov_b64", EXEC, m if m in (-1, 1) else hex(m))
    else:
        e.ins("salu", "s_mov_b32", f"s_mov_b32 exec_lo, {hex(m & 0xffffffff)}", [], [EXEC]); e.ins("salu", "s_mov_b32", f"s_mov_b32 exec_hi, {hex(m >> 32)}", [], [EXEC])
def stamp(name):
    if not DIAG: return
    e.memtime(sST); e.wait(lg="all")
    e.ins("valu", "v_writelane_b32", f"v_writelane_b32 {vST}, {sST[0]}, {len(stamps)}", [sST[0], vST], [vST]); stamps.append(name)

def srd(d, p, n):
    e.salu("s_mov_b32", d[0], p[0]); e.salu("s_and_b32", d[1], p[1], "0xffff"); e.salu("s_mov_b32", d[2], n); e.salu("s_mov_b32", d[3], "0x20000")
def smov(d, x): e.salu("s_mov_b32", d, x)
def sadd(d, x, y): e.salu("s_add_u32", d, x, y)
def smul(d, x, y): e.salu("s_mul_i32", d, x, y)
def smad(d, x, m, c):
    smul(d, x, m); sadd(d, d, c)
def vmov(d, x): e.valu("v_mov_b32", d, x)

e.scmp("s_cmp_ge_u32", S(2), 256); e.branch("s_cbranch_scc1", "L_end")
e.smem("s_load_dwordx16", S(4, 16), S(0, 2), 0)
e.smem("s_load_dwordx4", S(20, 4), S(0, 2), 64)
lane = v.get(); l16 = v.get(); l4 = v.get(); vg = v.get(); vt = v.get(); t0 = v.get(); t1 = v.get(); t2 = v.get()
ldsb = [l16, v.get(), v.get()]
e.valu("v_and_b32", lane, 63, V(0))
e.valu("v_lshrrev_b32", t0, 6, V(0))
e.valu("v_lshlrev_b32", l16, 4, lane)
e.rfl(sW, t0)
e.valu("v_lshlrev_b32", l4, 2, lane)
e.valu("v_lshrrev_b32", vg, 4, lane)
e.valu("v_and_b32", vt, 15, lane)
e.valu("v_add_u32", ldsb[1], "0x10000", l16)
e.valu("v_add_u32", ldsb[2], "0x20000", l16)
e.salu("s_and_b32", sT[0], S(2), 7); e.salu("s_lshl_b32", sT[0], sT[0], 1)
e.salu("s_bfe_u32", sT[1], S(2), "0x10003"); sadd(sI, sT[0], sT[1]); e.salu("s_lshr_b32", sJ, S(2), 4)
vx = v.get(); vx3 = v.get()
e.valu("v_and_b32", t0, 7, lane); e.valu("v_lshrrev_b32", t1, 3, lane)
e.valu("v_mul_u32_u24", vx, 1280, t0); e.valu("v_lshl_add_u32", vx, t1, 4, vx)
e.salu("s_lshl_b32", sT[0], sW, 7); e.valu("v_add_u32", vx, sT[0], vx)
e.scmp("s_cmp_ge_u32", sW, 2); e.salu("s_cselect_b32", sT[1], OOB, 0); e.valu("v_add_u32", vx3, sT[1], vx)
e.wait(lg="all")
srd(WS, pWS, 256 << 20); srd(XS, pX, 2621440)
e.smem("s_load_dwordx2", TAG, pWS, EPOCH)
stamp("start")
sRow = sT[2]
e.salu("s_lshl_b32", sT[0], sI, 7); e.salu("s_lshl_b32", sT[1], sJ, 3); sadd(sT[0], sT[0], sT[1]); smul(sRow, sT[0], 1280)
xr = [v.get(4) for _ in range(3)]
tx = [e.bload(xr[0], vx, XS, sRow, 0), e.bload(xr[1], vx, XS, sRow, 512), e.bload(xr[2], vx3, XS, sRow, 1024)]
srd(QS, pWQKV, 2457600)
smul(sT[0], sI, 40 * 3840); smad(sT[1], sJ, 80, sT[0])
for q in range(3):
    e.salu("s_lshl_b32", sT[3], sW, 6); sadd(sT[3], sT[3], 256 * q)
    e.valu("v_add_u32", t0, sT[3], lane)
    e.valu("v_mul_u32_u24", t1, 4370, t0); e.valu("v_lshrrev_b32", t1, 16, t1)
    e.valu("v_mul_u32_u24", t2, 15, t1); e.valu("v_sub_u32", t0, t0, t2)
    e.valu("v_mul_u32_u24", t1, 3840, t1); e.valu("v_lshl_add_u32", t1, t0, 4, t1)
    e.valu("v_mul_u32_u24", t0, 13, t0); e.valu("v_lshrrev_b32", t0, 6, t0)
    e.valu("v_mul_u32_u24", t0, 1200, t0); e.valu("v_add_u32", t1, t1, t0)
    e.salu("s_lshl_b32", sT[3], sW, 10); e.salu("s_add_u32", M0, sT[3], SCRW + 4096 * q)
    tw = e.bdma(t1, QS, sT[1], 0)
e.misc("s_getpc_b64 s[96:97]")
e.valu("v_lshlrev_b32", t0, 7, V(0))
cp = v.get()
for q in range(opt("cpf", 2)):
    e.gload(cp, t0, S(96, 2)); e.valu("v_add_u32", t0, "0x8000", t0)
sU = sg.get(); sCG = sg.get(); sStr = sg.get(); sUB = sg.get()
lw2, lwo, lgo = "L_u_w2", "L_u_wo", "L_u_go"
e.scmp("s_cmp_ge_u32", S(2), 108); e.branch("s_cbranch_scc1", lw2)
srd(K2, pW1, 2211840); e.salu("s_and_b32", sU, S(2), 3); e.salu("s_lshr_b32", sCG, S(2), 2); smov(sStr, 3456); smul(sUB, sU, 160 * 3456)
e.branch("s_branch", lgo)
e.label(lw2)
e.scmp("s_cmp_ge_u32", S(2), 188); e.branch("s_cbranch_scc1", lwo)
srd(K2, pW2, 2211840); e.salu("s_sub_u32", sT[0], S(2), 108); e.salu("s_and_b32", sU, sT[0], 7); e.salu("s_lshr_b32", sCG, sT[0], 3); smov(sStr, 1280)
smul(sUB, sU, 224 * 1280); e.scmp("s_cmp_eq_u32", sU, 7); e.salu("s_cselect_b32", sUB, 1536 * 1280, sUB)
e.branch("s_branch", lgo)
e.label(lwo)
srd(K2, pWO, 819200); e.salu("s_sub_u32", sT[0], S(2), 188); e.salu("s_and_b32", sU, sT[0], 3); e.salu("s_lshr_b32", sCG, sT[0], 2); smov(sStr, 1280)
smul(sUB, sU, 160 * 1280)
e.scmp("s_cmp_ge_u32", S(2), 228); e.salu("s_cselect_b32", sUB, OOB, sUB)
e.label(lgo)
e.salu("s_lshl_b32", sT[0], sCG, 7); sadd(sUB, sUB, sT[0])
e.valu("v_lshrrev_b32", t0, 3, lane); e.valu("v_mul_lo_u32", t0, t0, sStr); e.valu("v_and_b32", t1, 7, lane); e.valu("v_lshl_add_u32", t0, t1, 4, t0)
e.salu("s_lshl_b32", sT[4], sStr, 3)
smul(sT[0], sT[4], sW); sadd(sT[0], sT[0], sUB); e.salu("s_lshl_b32", sT[4], sT[4], 2)
e.salu("s_lshl_b32", sT[3], sW, 10)
for q in range(7):
    e.salu("s_add_u32", M0, sT[3], SCR2 + 4096 * q)
    tp2 = e.bdma(t0, K2, sT[0], 0)
    if q < 6: sadd(sT[0], sT[0], sT[4])
srd(PS, pWPHI, 25600)
wtmp = v.get(32); wphi = {}
sPh = sT[5]; smul(sPh, sJ, 1600)
vA = v.get(); vA2 = [v.get(), v.get()]; vB = [v.get(), v.get()]; vB2 = [v.get(), v.get()]
e.valu("v_mul_u32_u24", vA, 160, vg); e.valu("v_lshl_add_u32", vA, vt, 1, vA)
e.valu("v_lshrrev_b32", t0, 2, vt); e.valu("v_lshlrev_b32", t0, 1, t0); e.valu("v_add_u32", t0, 32, t0)
e.valu("v_and_b32", t1, 3, vt)
oobv = v.get(); vmov(oobv, OOB)
for h in range(2):
    e.valu("v_lshlrev_b32", t2, 1, vt)
    e.valu("v_cmp_eq_u32", VCC, h, vg); e.valu("v_cndmask_b32", vA2[h], oobv, t2)
    e.valu("v_cndmask_b32", vB2[h], oobv, t0)
    e.valu("v_mul_u32_u24", t2, 160, vg); e.valu("v_add_u32", t2, t2, t0)
    e.valu("v_cmp_eq_u32", VCC, h, t1); e.valu("v_cndmask_b32", vB[h], oobv, t2); e.valu("v_cndmask_b32", vB2[h], oobv, vB2[h])
n = 0
for h in range(2):
    for tl in range(2):
        for jj in range(8):
            vo = (vA if jj < 4 else vA2[h]) if tl == 0 else (vB[h] if jj < 4 else vB2[h])
            d = jj if jj < 4 else 16 + jj - 4
            twp = e.bload(wtmp[n], vo, PS, sPh, 800 * h + 40 * d, op="buffer_load_ushort"); n += 1
v.put(vA, vA2, vB, vB2, oobv)
srd(OS, pOUT, 2621440)

ones = v.get(); vmov(ones, "0x3f803f80")
s1 = v.get(2)
e.wait(vm=tx[2])
stamp("x_arrived")
vmov(s1[0], 0); vmov(s1[1], 0)
for q in range(3):
    for r in range(4):
        e.valu("v_dot2_f32_bf16", s1[0], xr[q][r], ones, s1[0])
for q in range(3):
    for r in range(4):
        e.valu("v_dot2_f32_bf16", s1[1], xr[q][r], xr[q][r], s1[1])
DPP8 = "row_ror:8 row_mask:0xf bank_mask:0xf"
e.valu("v_add_f32", s1[0], s1[0], s1[0], mods=DPP8); e.valu("v_add_f32", s1[1], s1[1], s1[1], mods=DPP8)
e.perm("v_permlane16_swap_b32", s1[0], s1[1]); e.valu("v_add_f32", s1[0], s1[0], s1[1])
vmov(s1[1], s1[0]); e.perm("v_permlane32_swap_b32", s1[0], s1[1]); e.valu("v_add_f32", s1[0], s1[0], s1[1])
e.valu("v_and_b32", t0, 7, lane); e.valu("v_and_b32", t1, 16, lane); e.valu("v_lshlrev_b32", t0, 2, t0); e.valu("v_lshl_add_u32", t1, t1, 1, t0)
e.salu("s_lshl_b32", sT[0], sW, 6); sadd(sT[0], sT[0], LNX); e.valu("v_add_u32", t1, sT[0], t1)
e.dsw(t1, s1[0])
e.valu("v_add_u32", t0, LNX, t0)
e.wait(vm=tw, lg="all")
e.barrier()
st = v.get(8)
for q in range(8): e.dsr(st[q], t0, 32 * q)
colq = v.get()
tab = {0: [80 + 8 * c for c in range(4)], 1: [120 + 8 * c for c in range(4)], 2: [112, 152, 192, 232], 3: [160 + 8 * c for c in range(4)],
       4: [200 + 8 * c for c in range(4)], 5: [8 * c for c in range(4)], 6: [40 + 8 * c for c in range(4)], 7: [32, 72, 32, 72]}
def pack4(x): return hex(x[0] | x[1] << 8 | x[2] << 16 | x[3] << 24)
e.salu("s_and_b32", sT[3], sW, 1)
for c in range(4):
    e.scmp("s_cmp_eq_u32", sT[3], 0)
    smov(sT[6], pack4([tab[4 + g][c] for g in range(4)]))
    e.salu("s_cselect_b32", sT[4 + (c & 1)], pack4([tab[g][c] for g in range(4)]), sT[6])
    if c == 0: vmov(colq, sT[4])
    else:
        e.valu("v_and_b32", t1, 3, lane); e.valu("v_cmp_eq_u32", VCC, c, t1); vmov(t2, sT[4 + (c & 1)]); e.valu("v_cndmask_b32", colq, colq, t2)
e.valu("v_lshlrev_b32", t1, 3, vg); e.valu("v_lshrrev_b32", colq, t1, colq); e.valu("v_and_b32", colq, "0xff", colq)
e.valu("v_bfe_u32", t1, lane, 2, 2); e.valu("v_mul_u32_u24", t1, 240, t1); e.valu("v_add_u32", colq, colq, t1)
e.salu("s_lshr_b32", sT[4], sW, 1); smad(sT[5], sT[4], 8 * 240, SCRW); e.valu("v_add_u32", colq, sT[5], colq)
wq = [v.get(4) for _ in range(3)]
for q in range(3):
    e.dstr(wq[q][0:2], colq, q * 16 * 240); e.dstr(wq[q][2:4], colq, q * 16 * 240 + 4 * 240)
e.wait(lg=e.lg - 6)
for q in (2, 4, 6): e.valu("v_add_f32", st[0], st[0], st[q]); e.valu("v_add_f32", st[1], st[1], st[q + 1])
vmov(t1, hex(0x3acccccd))
e.valu("v_mul_f32", st[0], st[0], t1); e.valu("v_mul_f32", st[1], st[1], t1)
e.valu("v_fma_f32", st[1], Neg(st[0]), st[0], st[1]); e.valu("v_max_f32", st[1], 0, st[1]); e.valu("v_add_f32", st[1], "0x3727c5ac", st[1])
e.valu("v_rsq_f32", st[1], st[1]); e.valu("v_mul_f32", st[0], st[0], st[1])
e.valu("v_lshrrev_b32", t1, 3, lane); e.valu("v_lshlrev_b32", t1, 8, t1); e.valu("v_and_b32", t2, 7, lane); e.valu("v_lshl_add_u32", t1, t2, 4, t1)
e.salu("s_lshl_b32", sT[0], sI, 3); e.salu("s_lshr_b32", sT[1], sJ, 1); sadd(sT[0], sT[0], sT[1]); smad(sT[0], sT[0], 20 * KB, XN)
e.salu("s_and_b32", sT[1], sJ, 1); e.salu("s_lshl_b32", sT[1], sT[1], 7); sadd(sT[0], sT[0], sT[1])
e.salu("s_lshl_b32", sT[1], sW, 11); sadd(sT[0], sT[0], sT[1])
e.scmp("s_cmp_ge_u32", sW, 2); e.salu("s_cselect_b32", sT[1], OOB, 0); e.valu("v_add_u32", t2, sT[1], t1)
lo = v.get(); hi = v.get()
for q in range(3):
    for r in range(4):
        e.valu("v_lshlrev_b32", lo, 16, xr[q][r]); e.valu("v_and_b32", hi, "0xffff0000", xr[q][r])
        e.valu("v_fma_f32", lo, lo, st[1], Neg(st[0])); e.valu("v_fma_f32", hi, hi, st[1], Neg(st[0]))
        e.valu("v_cvt_pk_bf16_f32", xr[q][r], lo, hi)
    e.bstore(xr[q], t1 if q < 2 else t2, WS, sT[0], 0, "sc1")
    if q < 2: sadd(sT[0], sT[0], 8192)
v.put(lo, hi, st, s1, vx, vx3)
e.salu("s_and_b32", sT[3], sW, 1); e.salu("s_lshl_b32", sT[3], sT[3], 2); e.valu("v_add_u32", t0, sT[3], vg)
vmul = v.get(); vbas = v.get()
e.valu("v_cmp_gt_u32", VCC, 5, t0)
vmov(t1, 3 * KB); vmov(t2, 5 * KB); e.valu("v_cndmask_b32", vmul, t1, t2)
vmov(t1, 95 * KB); vmov(t2, 0); e.valu("v_cndmask_b32", vbas, t1, t2)
e.valu("v_lshl_add_u32", vbas, t0, 10, vbas); e.valu("v_lshl_add_u32", vbas, vt, 4, vbas)
smad(sT[6], sJ, 160 * KB, WQKV)
smul(sT[0], sI, 5); e.salu("s_lshr_b32", sT[1], sW, 1); sadd(sT[0], sT[0], sT[1])
e.wait(lg="all")
for q in range(3):
    e.salu("s_lshr_b32", sT[1], sT[0], 2); e.salu("s_and_b32", sT[2], sT[0], 3); e.salu("s_lshl_b32", sT[2], sT[2], 8); sadd(sT[2], sT[2], sT[6])
    if q == 2:
        e.scmp("s_cmp_ge_u32", sW, 2); e.salu("s_cselect_b32", sT[2], OOB, sT[2])
    e.valu("v_mad_u32_u24", t0, vmul, sT[1], vbas)
    e.bstore(wq[q], t0, WS, sT[2], 0, "sc1")
    sadd(sT[0], sT[0], 2)
v.put(vmul, vbas, colq)
z4 = v.get(4)
for r in range(4): vmov(z4[r], 0)
e.salu("s_lshl_b32", sT[0], sJ, 13); e.salu("s_lshl_b32", sT[1], sI, 9); sadd(sT[0], sT[0], sT[1]); sadd(sT[0], sT[0], KVACC)
e.scmp("s_cmp_eq_u32", sW, 3); e.salu("s_cselect_b32", sT[0], sT[0], OOB)
setexec(0xffffffff)
e.bstore(z4, l16, WS, sT[0], 0, "sc1")
e.salu("s_mov_b64", EXEC, -1)
e.salu("s_add_u32", TAG[0], TAG[0], 1); e.salu("s_addc_u32", TAG[1], TAG[1], 0)
vtag = v.get(2); vmov(vtag[0], TAG[0]); vmov(vtag[1], TAG[1])
zero = v.get(); vmov(zero, 0)
sFl = sg.get()
e.salu("s_lshl_b32", sFl, sI, 4); sadd(sFl, sFl, sJ); smad(sFl, sFl, 128, FLAGS)

def publish(stage, vm="all"):
    e.wait(vm=vm); e.barrier()
    lab = e.newlabel("L_pub")
    e.scmp("s_cmp_lg_u32", sW, 0); e.branch("s_cbranch_scc1", lab)
    sadd(sT[7], sFl, stage * 0x8000)
    e.salu("s_mov_b64", EXEC, 1)
    e.bstore(vtag, zero, WS, sT[7], 0, "sc1"); e.vm -= 1
    e.salu("s_mov_b64", EXEC, -1)
    e.label(lab)

pv = v.get(2)
def poll(stage, voff, execmask, nload=1, vm=None):
    if vm is not None: e.wait(vm=vm)
    done = e.newlabel("L_pd"); top = e.newlabel("L_pt")
    e.scmp("s_cmp_lg_u32", sW, 0); e.branch("s_cbranch_scc1", done)
    setexec(execmask); smov(sSPIN, SPIN)
    for q in range(nload):
        top = e.newlabel("L_pt"); nxt = e.newlabel("L_pn")
        smov(sT[7], FLAGS + stage * 0x8000 + q * 64 * 128)
        e.label(top)
        e.bload(pv, voff, WS, sT[7], 0, "sc1"); e.vm -= 1
        e.misc("s_waitcnt vmcnt(0)")
        e.valu("v_cmp_ne_u64", VCC, TAG, pv)
        e.branch("s_cbranch_vccz", nxt)
        e.salu("s_sub_u32", sSPIN, sSPIN, 1); e.scmp("s_cmp_lg_u32", sSPIN, 0)
        e.branch("s_cbranch_scc1", top)
        e.label(nxt)
    e.salu("s_mov_b64", EXEC, -1)
    e.label(done)
    e.barrier()

publish(F_P0)
stamp("p0_pub")
v.put(xr, wq, z4)

n = 0
for h in range(2):
    for tl in range(2):
        wphi[(h, tl)] = v.get(4)
        for r in range(4):
            e.valu("v_lshl_or_b32", wphi[(h, tl)][r], wtmp[n + 1], 16, wtmp[n]); n += 2
v.put(wtmp)

trb = v.get(); fr = [v.get(4) for _ in range(7)]
e.valu("v_lshrrev_b32", t0, 2, lane); e.valu("v_lshlrev_b32", t0, 7, t0); e.valu("v_and_b32", t1, 3, lane); e.valu("v_lshl_add_u32", trb, t1, 3, t0)
e.salu("s_lshl_b32", sT[0], sW, 5); sadd(sT[0], sT[0], SCR2); e.valu("v_add_u32", trb, sT[0], trb)
e.salu("s_lshl_b32", sT[1], sCG, 2); sadd(sT[1], sT[1], sW)
lp_w2, lp_wo, lp_done = "L_p_w2", "L_p_wo", "L_p_done"
vm_save = e.vm
def pk_reads(rows, base=None):
    for q, (r0, r1) in enumerate(rows):
        b = trb if base is None or q < len(rows) - 1 else base
        e.dstr(fr[q][0:2], b, r0 * 128); e.dstr(fr[q][2:4], b, r1 * 128)
def div_small(d, x, m, sh): smul(d, x, m); e.salu("s_lshr_b32", d, d, sh)
e.scmp("s_cmp_ge_u32", S(2), 108); e.branch("s_cbranch_scc1", lp_w2)
pk_reads([(80 * (q >> 1) + 32 * (q & 1), 80 * (q >> 1) + 32 * (q & 1) + 16) for q in range(4)] + [(64, 144)])
div_small(sT[2], sT[1], 9363, 16)
smul(sT[3], sT[2], 7); e.salu("s_sub_u32", sT[3], sT[1], sT[3])
e.salu("s_sub_u32", sT[4], sT[1], 84); div_small(sT[5], sT[4], 10923, 16); smul(sT[6], sT[5], 6); e.salu("s_sub_u32", sT[4], sT[4], sT[6]); sadd(sT[5], sT[5], 12)
e.scmp("s_cmp_ge_u32", sT[1], 84); e.salu("s_cselect_b32", sT[2], sT[5], sT[2]); e.salu("s_cselect_b32", sT[3], sT[4], sT[3])
smad(sT[2], sT[2], 140 * KB, W1); e.salu("s_lshl_b32", sT[3], sT[3], 10); sadd(sT[2], sT[2], sT[3])
csa = v.get(4); o4 = v.get(4)
for r in range(4): vmov(o4[r], ones)
e.wait(lg="all")
for q in range(5):
    if q < 4: smad(sT[3], sU, 28 * KB, q * 7 * KB)
    else: smad(sT[3], sU, 7 * KB, 16 * 7 * KB)
    sadd(sT[3], sT[3], sT[2]); e.bstore(fr[q], l16, WS, sT[3], 0, "sc1")
    e.mfma(csa, fr[q], o4, 0 if q == 0 else csa)
e.salu("s_lshl_b32", sT[3], sU, 13); e.salu("s_lshl_b32", sT[4], sT[1], 6); sadd(sT[3], sT[3], sT[4]); sadd(sT[3], sT[3], CS1)
e.valu("v_lshlrev_b32", t0, 4, vg)
setexec(0x0001000100010001)
e.bstore(csa, t0, WS, sT[3], 0, "sc1")
e.salu("s_mov_b64", EXEC, -1)
v.put(csa, o4)
e.branch("s_branch", lp_done)
e.label(lp_w2)
e.scmp("s_cmp_ge_u32", S(2), 188); e.branch("s_cbranch_scc1", lp_wo)
div_small(sT[2], sT[1], 13108, 16); smul(sT[3], sT[2], 5); e.salu("s_sub_u32", sT[3], sT[1], sT[3])
smad(sT[2], sT[2], 270 * KB, W2); e.salu("s_lshl_b32", sT[3], sT[3], 10); sadd(sT[2], sT[2], sT[3])
lp_w2b = "L_p_w2b"
e.scmp("s_cmp_ge_u32", sU, 6); e.branch("s_cbranch_scc1", lp_w2b)
pk_reads([(112 * (q // 3) + 32 * (q % 3), 112 * (q // 3) + 32 * (q % 3) + 16) for q in range(6)] + [(96, 208)])
e.wait(lg="all")
for q in range(7):
    if q < 6: smad(sT[3], sU, 30 * KB, q * 5 * KB)
    else: smad(sT[3], sU, 5 * KB, 48 * 5 * KB)
    sadd(sT[3], sT[3], sT[2]); e.bstore(fr[q], l16, WS, sT[3], 0, "sc1")
e.branch("s_branch", lp_done)
e.label(lp_w2b)
pk_reads([(32 * q, 32 * q + 16) for q in range(6)])
e.wait(lg="all")
for q in range(6):
    smad(sT[3], sU, 30 * KB, q * 5 * KB); sadd(sT[3], sT[3], sT[2]); e.bstore(fr[q], l16, WS, sT[3], 0, "sc1")
e.branch("s_branch", lp_done)
e.label(lp_wo)
e.scmp("s_cmp_ge_u32", S(2), 228); e.branch("s_cbranch_scc1", lp_done)
lb = v.get()
e.valu("v_bfe_u32", t0, lane, 3, 1); e.valu("v_mul_u32_u24", t0, 40, t0); e.valu("v_bfe_u32", t1, lane, 2, 1); e.valu("v_mul_u32_u24", t1, 20, t1)
e.valu("v_add3_u32", t0, t0, t1, vg); e.valu("v_lshlrev_b32", t0, 7, t0); e.valu("v_and_b32", t1, 3, lane); e.valu("v_lshl_add_u32", lb, t1, 3, t0)
e.valu("v_add_u32", lb, sT[0], lb)
pk_reads([(40 * q, 40 * q + 20) for q in range(4)] + [(16, 96)], base=lb)
div_small(sT[2], sT[1], 13108, 16); smul(sT[3], sT[2], 5); e.salu("s_sub_u32", sT[3], sT[1], sT[3])
smad(sT[2], sT[2], 100 * KB, WO); e.salu("s_lshl_b32", sT[3], sT[3], 10); sadd(sT[2], sT[2], sT[3])
e.wait(lg="all")
for q in range(5):
    if q < 4: smad(sT[3], sU, 20 * KB, q * 5 * KB)
    else: smad(sT[3], sU, 5 * KB, 16 * 5 * KB)
    sadd(sT[3], sT[3], sT[2]); e.bstore(fr[q], l16, WS, sT[3], 0, "sc1")
v.put(lb)
e.label(lp_done)
e.nop(2)
e.vm = vm_save + 1; tpk = e.vm
v.put(trb, fr); sg.put(sU, sCG, sStr, sUB)
stamp("pack2_done")

vrow = v.get(); vcol = v.get(); vrc = v.get(); vall = v.get()
e.salu("s_lshl_b32", sT[0], sI, 11); e.valu("v_lshl_add_u32", vrow, vt, 7, sT[0])
e.salu("s_lshl_b32", sT[0], sJ, 7); e.valu("v_lshl_add_u32", vcol, vt, 11, sT[0])
e.valu("v_cmp_eq_u32", VCC, 0, vg); e.valu("v_cndmask_b32", vrc, vcol, vrow)
e.valu("v_lshlrev_b32", vall, 7, lane)
poll(F_P0, vrc, 0xffffffff)
stamp("p0_sync")

def dma_lin(gbase_s, goff, lds_of_slot, slots, fl="sc1"):
    raise NotImplementedError

def dma_run(sbase, first, count_per_wave, lds_first, fl="sc1"):
    smul(sT[6], sW, count_per_wave * KB)
    tok = None
    for q in range(0, count_per_wave, 4):
        sadd(sT[5], sT[6], sbase); sadd(sT[5], sT[5], (first + q) * KB)
        e.salu("s_add_u32", M0, sT[6], (lds_first + q) * KB)
        for r in range(min(4, count_per_wave - q)):
            tok = e.bdma(l16, WS, sT[5], r * KB, fl)
    return tok

def gemm(nsteps, nM, Bof, acc, slot_addr, LA, ready=None, bwait=None, first_zero=True):
    sets = [[v.get(4) for _ in range(nM)] for _ in range(LA + 1)]
    tok = {}
    def rd(s, tau):
        ad = slot_addr(s, tau); tok[(s, tau)] = e.dsr(sets[s % (LA + 1)][tau], ldsb[ad >> 16], ad & 0xffff)
    for s in range(min(LA, nsteps)):
        if ready: ready(s)
        for tau in range(nM): rd(s, tau)
    for s in range(nsteps):
        if s + LA < nsteps and ready: ready(s + LA)
        if bwait: bwait(s)
        B = Bof(s)
        for tau in range(nM):
            e.wait(lg=tok[(s, tau)])
            for n_, b in enumerate(B):
                e.mfma(acc[n_][tau], sets[s % (LA + 1)][tau], b, 0 if (s == 0 and first_zero) else acc[n_][tau])
            if s + LA < nsteps: rd(s + LA, tau)
    v.put(sets)

def reduce4(vals, op, post=None):
    a_, b_, c_, d_ = vals
    e.perm("v_permlane16_swap_b32", a_, b_); e.perm("v_permlane16_swap_b32", c_, d_)
    e.valu(op, a_, a_, b_); e.valu(op, c_, c_, d_)
    e.perm("v_permlane32_swap_b32", a_, c_); e.valu(op, a_, a_, c_)
    if post: post(a_)
    vmov(c_, a_); e.perm("v_permlane32_swap_b32", a_, c_)
    vmov(b_, a_); vmov(d_, c_)
    e.perm("v_permlane16_swap_b32", a_, b_); e.perm("v_permlane16_swap_b32", c_, d_)

sL = sg.get(); smov(sL, LOG2E)
def feature_map(acc, T0, T1, T2):
    Bk = [[v.get(4) for h in range(2)] for n_ in range(2)]
    for n_ in range(2):
        for h in range(2):
            src = acc[n_][T0 if h == 0 else T1]
            e.valu("v_cvt_pk_bf16_f32", Bk[n_][h][0], src[0], src[1]); e.valu("v_cvt_pk_bf16_f32", Bk[n_][h][1], src[2], src[3])
            s2 = acc[n_][T2]
            e.valu("v_cvt_pk_bf16_f32", Bk[n_][h][2], s2[0], s2[1]); e.valu("v_cvt_pk_bf16_f32", Bk[n_][h][3], s2[2], s2[3])
    DA = [[v.get(4) for h in range(2)] for n_ in range(2)]; DB = [v.get(4) for n_ in range(2)]
    for n_ in range(2):
        for h in range(2): e.mfma(DA[n_][h], wphi[(h, 0)], Bk[n_][h], 0)
    for h in range(2):
        for n_ in range(2): e.mfma(DB[n_], wphi[(h, 1)], Bk[n_][h], 0 if h == 0 else DB[n_])
    v.put(Bk)
    U = [(n_, h) for n_ in range(2) for h in range(2)]
    P = {u: [DA[u[0]][u[1]][r] for r in range(4)] + [DB[u[0]][u[1]]] for u in U}
    mx = {u: [v.get(), v.get()] for u in U}
    for u in U:
        p = P[u]
        e.valu("v_max3_f32", mx[u][0], p[0], p[1], p[2]); e.valu("v_max3_f32", mx[u][1], Neg(p[0]), Neg(p[1]), Neg(p[2]))
    for u in U:
        p = P[u]
        e.valu("v_max3_f32", mx[u][0], mx[u][0], p[3], p[4]); e.valu("v_max3_f32", mx[u][1], mx[u][1], Neg(p[3]), Neg(p[4]))
    for n_ in range(2):
        reduce4(mx[(n_, 0)] + mx[(n_, 1)], "v_max_f32", post=lambda r: e.valu("v_mul_f32", r, sL, r))
    E = {u: [v.get(5, 1), v.get(5, 1)] for u in U}
    for u in U:
        for q in range(5):
            e.valu("v_fma_f32", E[u][0][q], P[u][q], sL, Neg(mx[u][0])); e.valu("v_fma_f32", E[u][1][q], Neg(P[u][q]), sL, Neg(mx[u][1]))
        for q in range(5):
            e.valu("v_exp_f32", E[u][0][q], E[u][0][q]); e.valu("v_exp_f32", E[u][1][q], E[u][1][q])
    v.put(DA, DB)
    for u in U:
        for sgn in range(2):
            x = E[u][sgn]; m = mx[u][sgn]
            e.valu("v_add_f32", m, x[0], x[1])
        for q in range(2, 5):
            for sgn in range(2): e.valu("v_add_f32", mx[u][sgn], mx[u][sgn], E[u][sgn][q])
    for n_ in range(2):
        reduce4(mx[(n_, 0)] + mx[(n_, 1)], "v_add_f32", post=lambda r: e.valu("v_rcp_f32", r, r))
    blk = v.get(26, 2)
    phi = [[blk[12 * n_ + 6 * h: 12 * n_ + 6 * h + 6] for h in range(2)] for n_ in range(2)]
    for u in U:
        for sgn in range(2):
            for q in range(5): e.valu("v_mul_f32", E[u][sgn][q], E[u][sgn][q], mx[u][sgn])
        o = phi[u[0]][u[1]]
        e.valu("v_cvt_pk_bf16_f32", o[0], E[u][0][0], E[u][0][1]); e.valu("v_cvt_pk_bf16_f32", o[1], E[u][0][2], E[u][0][3])
        e.valu("v_cvt_pk_bf16_f32", o[2], E[u][1][0], E[u][1][1]); e.valu("v_cvt_pk_bf16_f32", o[3], E[u][1][2], E[u][1][3])
        e.valu("v_cvt_pk_bf16_f32", o[4], E[u][0][4], E[u][1][4]); vmov(o[5], 0)
    vmov(blk[24], 0); vmov(blk[25], 0)
    for u in U: v.put(E[u], mx[u])
    return phi, blk

xf = [[a.get(4) for s in range(20)] for n_ in range(2)]
sWq = sg.get(); sXn = sg.get()
smad(sWq, sJ, 160 * KB, WQKV)
e.salu("s_lshl_b32", sT[0], sI, 3); e.salu("s_lshl_b32", sT[1], sW, 1); sadd(sT[0], sT[0], sT[1]); smad(sXn, sT[0], 20 * KB, XN)
ctok = {}
def issue_chunk(q):
    dma_run(sWq, 20 * q, 5, 20 * q)
    for n_ in range(2):
        sadd(sT[5], sXn, n_ * 20 * KB + 4 * q * KB)
        for r in range(4): ctok[q] = e.bload(xf[n_][4 * q + r], l16, WS, sT[5], r * KB, "sc1")
for q in range(4): issue_chunk(q)
wq_tok = [None]
def ready_kv(s):
    if s % 4: return
    q = s // 4
    e.wait(vm=ctok[q]); e.barrier()
    if q == 0:
        lab = e.newlabel("L_pub")
        e.scmp("s_cmp_lg_u32", sW, 0); e.branch("s_cbranch_scc1", lab)
        sadd(sT[7], sFl, F_PK * 0x8000); e.salu("s_mov_b64", EXEC, 1)
        e.bstore(vtag, zero, WS, sT[7], 0, "sc1"); e.vm -= 1
        e.salu("s_mov_b64", EXEC, -1); e.label(lab)
        stamp("kv_c0")
        issue_chunk(4)
    if q == 1: wq_tok[0] = dma_run(sWq, 100, 15, 100)
acc = [[v.get(4) for t in range(5)] for n_ in range(2)]
gemm(20, 5, lambda s: [xf[0][s], xf[1][s]], acc, lambda s, t: (5 * s + t) * KB, 2, ready=ready_kv)
stamp("kv_loop")
e.wait(vm=wq_tok[0])
poll(F_PK, vall, -1, nload=4)
sWo = sg.get(); sC = sg.get(); sHalf = sg.get()
e.salu("s_and_b32", sC, sJ, 7); e.salu("s_lshr_b32", sHalf, sJ, 3); smad(sWo, sC, 100 * KB, WO)
dma_run(sWo, 40, 15, 40)
phik, blkk = feature_map(acc, 0, 1, 2)
wa = v.get(); wb = v.get(); pk2 = v.get(2); tl4 = v.get(4)
e.valu("v_mul_u32_u24", wa, ROWB, vt); smul(sT[0], sW, 32 * ROWB); e.valu("v_add_u32", wa, sT[0], wa)
e.valu("v_lshl_add_u32", wb, vg, 2, wa); e.valu("v_lshl_add_u32", wa, vg, 3, wa)
for n_ in range(2):
    o = n_ * 16 * ROWB
    for h in range(2):
        e.dsw(wa, phik[n_][h][0:2], o + 96 * h); e.dsw(wa, phik[n_][h][2:4], o + 96 * h + 32); e.dsw(wa, phik[n_][h][4], o + 96 * h + 64)
        src = acc[n_][3 + h]
        e.valu("v_cvt_pk_bf16_f32", pk2[0], src[0], src[1]); e.valu("v_cvt_pk_bf16_f32", pk2[1], src[2], src[3])
        e.dsw(wa, pk2, o + 192 + 32 * h)
    for r in range(4): e.valu("v_cvt_pk_bf16_f32", tl4[r], acc[n_][2][r], 1.0)
    setexec(0xffffffff00000000)
    for r in range(4): e.dsw(wb, tl4[r], o + 256 - 8 + 8 * r)
    e.salu("s_mov_b64", EXEC, -1)
v.put(blkk, pk2, tl4, acc)
e.valu("v_lshrrev_b32", t0, 2, lane); e.valu("v_mul_u32_u24", t0, ROWB, t0); e.valu("v_and_b32", t1, 3, lane); e.valu("v_lshl_add_u32", t0, t1, 3, t0)
e.salu("s_lshr_b32", sT[0], sW, 1); smul(sT[1], sT[0], 96); e.valu("v_add_u32", wa, sT[1], t0)
smad(sT[1], sT[0], 32, 192); e.salu("s_and_b32", sT[2], sW, 1); e.scmp("s_cmp_eq_u32", sT[2], 1); e.salu("s_cselect_b32", sT[1], 256, sT[1]); e.valu("v_add_u32", wb, sT[1], t0)
e.wait(lg="all"); e.barrier()
kd = [v.get(4) for _ in range(3)]
for kp in range(4):
    fa = [v.get(4) for _ in range(3)]; fb = v.get(4)
    o = kp * 32 * ROWB
    e.dstr(fb[0:2], wb, o); e.dstr(fb[2:4], wb, o + 16 * ROWB)
    tk = []
    for m in range(3):
        e.dstr(fa[m][0:2], wa, o + 32 * m); tk.append(e.dstr(fa[m][2:4], wa, o + 32 * m + 16 * ROWB))
    for m in range(3):
        e.wait(lg=tk[m]); e.mfma(kd[m], fa[m], fb, 0 if kp == 0 else kd[m])
    v.put(fa, fb)
smul(sT[1], sT[0], 10 * 256); e.scmp("s_cmp_eq_u32", sT[2], 1); e.salu("s_cselect_b32", sT[1], 20 * 256, sT[1])
sKv = sg.get(); smad(sKv, sJ, 8192, KVACC); sadd(sT[1], sT[1], sKv)
e.scmp("s_cmp_eq_u32", sW, 1); e.salu("s_cselect_b32", sEX[0], "0x33333333", -1)
e.scmp("s_cmp_eq_u32", sW, 3); e.salu("s_cselect_b32", sEX[0], "0xcccccccc", sEX[0]); smov(sEX[1], sEX[0])
e.salu("s_mov_b64", EXEC, sEX)
for q in range(10):
    tat = e.bstore(kd[q // 4][q % 4], l4, WS, sT[1], 256 * q, op="buffer_atomic_add_f32")
e.salu("s_mov_b64", EXEC, -1)
v.put(kd, wa, wb)
stamp("kv_atomics")
e.barrier()
dma_run(sWo, 0, 10, 0)
acc = [[v.get(4) for t in range(3)] for n_ in range(2)]
gemm(20, 3, lambda s: [xf[0][s], xf[1][s]], acc, lambda s, t: QREG + (3 * s + t) * KB, 3)
a.put(xf)
stamp("q_loop")
publish(F_KV, vm=tat)
stamp("kv_pub")
sW1 = sg.get(); smad(sW1, sJ, 140 * KB, W1)
dma_run(sW1, 0, 15, 100)
phiq, blkq = feature_map(acc, 0, 1, 2)
v.put(acc)
sTok = sg.get()
e.salu("s_lshl_b32", sT[0], sI, 3); e.salu("s_lshl_b32", sT[1], sHalf, 2); sadd(sTok, sT[0], sT[1]); sadd(sTok, sTok, sW)
vro = v.get()
e.valu("v_mul_u32_u24", vro, 1280, vt); e.valu("v_lshl_add_u32", vro, vg, 3, vro)
sRo = sg.get(); smul(sRo, sTok, 16 * 1280); smad(sT[0], sC, 160, sRo); smov(sRo, sT[0])
xres = [v.get(2) for _ in range(5)]
for t in range(5): e.bload(xres[t], vro, XS, sRo, 32 * t)
cs = [v.get(4) for _ in range(7)]; cst = [v.get(4) for _ in range(7)]
smul(sT[0], sJ, 7 * 64); smad(sT[1], sJ, 6 * 64, 12 * 64); e.scmp("s_cmp_ge_u32", sJ, 12); e.salu("s_cselect_b32", sT[0], sT[1], sT[0]); sadd(sT[0], sT[0], CS1)
e.valu("v_lshlrev_b32", t0, 4, vg)
for u in range(4):
    for t in range(7): tcs = e.bload((cs if u == 0 else cst)[t], t0, WS, sT[0], 64 * t, "sc1")
    if u:
        e.wait(vm=tcs)
        for t in range(7):
            for r in range(4): e.valu("v_add_f32", cs[t][r], cs[t][r], cst[t][r])
    if u < 3: sadd(sT[0], sT[0], 8192)
v.put(cst)
stamp("q_soft")
poll(F_KV, vcol, 0xffff)
stamp("kv_sync")
kvr = v.get(30)
for q in range(30):
    if q == 16: sadd(sKv, sKv, 4096)
    tkv = e.bload(kvr[q], l4, WS, sKv, 256 * (q % 16), "sc1")
A0 = [v.get(4) for _ in range(3)]; A1 = [v.get(4) for _ in range(3)]
for m in range(3):
    for r in range(1, 4): vmov(A1[m][r], 0)
e.wait(vm=tkv)
for m in range(3):
    for r in range(4): e.valu("v_cvt_pk_bf16_f32", A0[m][r], kvr[10 * m + 2 * r], kvr[10 * m + 2 * r + 1])
    e.valu("v_cvt_pk_bf16_f32", A1[m][0], kvr[10 * m + 8], kvr[10 * m + 9])
v.put(kvr)
D0 = [[v.get(4) for h in range(2)] for n_ in range(2)]; D1 = [[v.get(4) for h in range(2)] for n_ in range(2)]
def b1(n_, h):
    r = phiq[n_][h]; return R("v", r.i + 4, 4)
for n_ in range(2):
    for h in range(2):
        e.mfma(D1[n_][h], A0[2], phiq[n_][h][0:4], 0); e.mfma(D0[n_][h], A0[h], phiq[n_][h][0:4], 0)
for n_ in range(2):
    for h in range(2):
        e.mfma(D1[n_][h], A1[2], b1(n_, h)); e.mfma(D0[n_][h], A1[h], b1(n_, h))
v.put(A0, A1)
sO = sg.get()
e.salu("s_lshl_b32", sT[0], sI, 3); e.salu("s_lshl_b32", sT[1], sW, 1); sadd(sO, sT[0], sT[1])
smad(sT[0], sO, 20 * KB, OP); e.salu("s_lshl_b32", sT[1], sJ, 10); sadd(sT[2], sT[0], sT[1])
e.salu("s_lshl_b32", sT[1], sJ, 8); sadd(sT[3], sT[0], sT[1]); sadd(sT[3], sT[3], 16 * KB)
for n_ in range(2):
    for h in range(2):
        dn = D1[n_][h][2 * h + 1]
        e.valu("v_add_f32", dn, "0x358637bd", dn)
for n_ in range(2):
    for h in range(2):
        dn = D1[n_][h][2 * h + 1]; e.valu("v_rcp_f32", dn, dn)
for n_ in range(2):
    om = v.get(4); ol = v.get()
    for h in range(2):
        dn = D1[n_][h][2 * h + 1]
        for r in range(4): e.valu("v_mul_f32", D0[n_][h][r], D0[n_][h][r], dn)
        e.valu("v_mul_f32", D1[n_][h][2 * h], D1[n_][h][2 * h], dn)
        e.valu("v_cvt_pk_bf16_f32", om[2 * h], D0[n_][h][0], D0[n_][h][1]); e.valu("v_cvt_pk_bf16_f32", om[2 * h + 1], D0[n_][h][2], D0[n_][h][3])
    e.valu("v_cvt_pk_bf16_f32", ol, D1[n_][0][0], D1[n_][1][2])
    e.bstore(om, l16, WS, sT[2], 0, "sc1"); e.bstore(ol, l4, WS, sT[3], 0, "sc1")
    if n_ == 0: sadd(sT[2], sT[2], 20 * KB); sadd(sT[3], sT[3], 20 * KB)
    hold = [om, ol]
    e.nop(2); v.put(om, ol)
v.put(D0, D1, blkq)
publish(F_O)
stamp("o_pub")
poll(F_O, vrow, 0xffff)
stamp("o_sync")

of = [a.get(4) for s in range(20)]
smad(sT[0], sTok, 20 * KB, OP)
btok = {}
for s in range(16):
    if s and s % 4 == 0: sadd(sT[0], sT[0], 4 * KB)
    btok[s] = e.bload(of[s], l16, WS, sT[0], (s % 4) * KB, "sc1")
sadd(sT[0], sT[0], 4 * KB)
for u in range(4):
    for q in range(4): btok[16 + u] = e.bload(of[16 + u][q], l4, WS, sT[0], (4 * u + q) * 256, "sc1")
acc = [[v.get(4) for t in range(5)]]
gemm(20, 5, lambda s: [of[s]], acc, lambda s, t: (5 * s + t) * KB, 2, bwait=lambda s: e.wait(vm=btok[s]))
a.put(of)
stamp("p2_loop")
e.barrier()
hp = v.get(10, 2); lo = v.get(); hi = v.get(); s1 = v.get(2)
for t in range(5):
    for p in range(2):
        e.valu("v_lshlrev_b32", lo, 16, xres[t][p]); e.valu("v_and_b32", hi, "0xffff0000", xres[t][p])
        e.valu("v_add_f32", lo, lo, acc[0][t][2 * p]); e.valu("v_add_f32", hi, hi, acc[0][t][2 * p + 1])
        e.valu("v_cvt_pk_bf16_f32", hp[2 * t + p], lo, hi)
v.put(acc, xres)
smad(sT[0], sTok, 20 * KB, HP); e.salu("s_lshl_b32", sT[1], sC, 11); sadd(sT[2], sT[0], sT[1])
e.salu("s_lshl_b32", sT[1], sC, 9); sadd(sT[3], sT[0], sT[1]); sadd(sT[3], sT[3], 16 * KB)
l8 = v.get(); e.valu("v_lshlrev_b32", l8, 3, lane)
e.bstore(hp[0:4], l16, WS, sT[2], 0, "sc1"); e.bstore(hp[4:8], l16, WS, sT[2], KB, "sc1"); e.bstore(hp[8:10], l8, WS, sT[3], 0, "sc1")
vmov(s1[0], 0); vmov(s1[1], 0)
for q in range(10): e.valu("v_dot2_f32_bf16", s1[0], hp[q], ones, s1[0])
for q in range(10): e.valu("v_dot2_f32_bf16", s1[1], hp[q], hp[q], s1[1])
e.perm("v_permlane16_swap_b32", s1[0], s1[1]); e.valu("v_add_f32", s1[0], s1[0], s1[1])
vmov(s1[1], s1[0]); e.perm("v_permlane32_swap_b32", s1[0], s1[1]); e.valu("v_add_f32", s1[0], s1[0], s1[1])
e.salu("s_lshl_b32", sT[0], sTok, 10); e.salu("s_lshl_b32", sT[1], sC, 7); sadd(sT[0], sT[0], sT[1]); sadd(sT[0], sT[0], ST2)
setexec(0xffffffff)
tst = e.bstore(s1[0], l4, WS, sT[0], 0, "sc1")
e.salu("s_mov_b64", EXEC, -1)
tw1 = dma_run(sW1, 60, 20, 0)
publish(F_H, vm=tst)
stamp("h_pub")
poll(F_H, vrow, 0xffff, vm=tw1)
stamp("h_sync")

hf = [[a.get(4) for s in range(20)] for n_ in range(2)]
vst = v.get(); e.valu("v_lshlrev_b32", vst, 8, vg); e.valu("v_lshl_add_u32", vst, vt, 2, vst)
stt = [v.get(4) for _ in range(3)]
smad(sT[2], sO, KB, ST2); smad(sT[3], sTok, KB, ST2)
for n_ in range(3):
    for q in range(4): tst = e.bload(stt[n_][q], vst, WS, sT[2] if n_ < 2 else sT[3], (KB if n_ == 1 else 0) + 64 * q, "sc1")
smad(sT[0], sO, 20 * KB, HP); sadd(sT[1], sT[0], 20 * KB)
btok = {}
for s in range(16):
    if s and s % 4 == 0: sadd(sT[0], sT[0], 4 * KB); sadd(sT[1], sT[1], 4 * KB)
    for n_ in range(2): btok[s] = e.bload(hf[n_][s], l16, WS, sT[n_], (s % 4) * KB, "sc1")
sadd(sT[0], sT[0], 4 * KB); sadd(sT[1], sT[1], 4 * KB)
for u in range(4):
    for n_ in range(2):
        for q in range(2): btok[16 + u] = e.bload(hf[n_][16 + u][2 * q:2 * q + 2], l8, WS, sT[n_], (2 * u + q) * 512, "sc1")
e.wait(vm=tst)
for n_ in range(3):
    e.valu("v_add_f32", stt[n_][0], stt[n_][0], stt[n_][2]); e.valu("v_add_f32", stt[n_][1], stt[n_][1], stt[n_][3])
reduce4([stt[0][0], stt[1][0], stt[2][0], stt[2][1]], "v_add_f32", post=lambda r: e.valu("v_mul_f32", r, hex(0x3acccccd), r))
rstd = stt[2][1]
e.valu("v_fma_f32", rstd, Neg(stt[2][0]), stt[2][0], rstd); e.valu("v_max_f32", rstd, 0, rstd); e.valu("v_add_f32", rstd, "0x3727c5ac", rstd)
e.valu("v_rsq_f32", rstd, rstd)
def w1slot(s, t):
    q = 7 * s + t
    return QREG + q * KB if q < 60 else (q - 60) * KB
acc = [[v.get(4) for t in range(7)] for n_ in range(2)]
gemm(20, 7, lambda s: [hf[0][s], hf[1][s]], acc, w1slot, 2, bwait=lambda s: e.wait(vm=btok[s]))
a.put(hf)
stamp("p3_loop")
e.barrier()
sW2 = sg.get(); smad(sW2, sC, 270 * KB, W2)
w2tok = {}
smad(sT[0], sO, 54 * KB, H1); smul(sT[1], sJ, 3 * KB); sadd(sT[2], sT[0], sT[1])
e.salu("s_lshl_b32", sT[1], sJ, 9); sadd(sT[3], sT[0], sT[1]); sadd(sT[3], sT[3], 48 * KB)
e.scmp("s_cmp_ge_u32", sJ, 12); e.salu("s_cselect_b32", sT[3], OOB, sT[3])
for n_ in range(2):
    ob = v.get(14, 2)
    for t in range(7):
        for r in range(4): e.valu("v_fma_f32", acc[n_][t][r], Neg(stt[n_][0]), cs[t][r], acc[n_][t][r])
        for p in range(2):
            e.valu("v_cvt_pk_bf16_f32", ob[2 * t + p], acc[n_][t][2 * p], acc[n_][t][2 * p + 1])
            e.valu("v_pk_max_i16", ob[2 * t + p], ob[2 * t + p], 0)
        if t % 2 == 1: e.bstore(ob[2 * t - 2:2 * t + 2], l16, WS, sT[2], (t // 2) * KB, "sc1")
    tst = e.bstore(ob[12:14], l8, WS, sT[3], 0, "sc1")
    if n_ == 0: sadd(sT[2], sT[2], 54 * KB); sadd(sT[3], sT[3], 54 * KB)
    e.nop(2); v.put(ob)
v.put(acc, cs)
for q in range(8): w2tok[q] = dma_run(sW2, 20 * q, 5, 20 * q)
publish(F_H1, vm=tst)
stamp("h1_pub")
poll(F_H1, vrow, 0xffff, vm=w2tok[7])
stamp("h1_sync")

gf = [a.get(4) for s in range(54)]
smad(sT[0], sTok, 54 * KB, H1)
btok = {}
for s in range(48):
    if s and s % 4 == 0: sadd(sT[0], sT[0], 4 * KB)
    btok[s] = e.bload(gf[s], l16, WS, sT[0], (s % 4) * KB, "sc1")
sadd(sT[0], sT[0], 4 * KB)
for u in range(6):
    if u == 4: sadd(sT[0], sT[0], 4 * KB)
    for q in range(2): btok[48 + u] = e.bload(gf[48 + u][2 * q:2 * q + 2], l8, WS, sT[0], ((2 * u + q) % 8) * 512, "sc1")
LA4 = 2
def ready4(s):
    if s % 4 == 0 and s // 4 >= 8:
        e.wait(vm=w2tok[s // 4]); e.barrier()
    if s % 4 == LA4 and s >= 4 + LA4:
        q = s // 4 - 1
        if q + 8 <= 13:
            e.barrier()
            if q + 8 < 13: w2tok[q + 8] = dma_run(sW2, 20 * (q + 8), 5, 20 * q)
            else:
                w2tok[13] = dma_run(sW2, 20 * 13, 5, 20 * q)
acc = [[v.get(4) for t in range(5)]]
gemm(54, 5, lambda s: [gf[s]], acc, lambda s, t: ((5 * s + t) % 160) * KB, LA4, ready=ready4, bwait=lambda s: e.wait(vm=btok[s]))
stamp("p4_loop")
ot = v.get(10, 2)
for t in range(5):
    for p in range(2):
        e.valu("v_lshlrev_b32", lo, 16, hp[2 * t + p]); e.valu("v_and_b32", hi, "0xffff0000", hp[2 * t + p])
        e.valu("v_fma_f32", lo, acc[0][t][2 * p], rstd, lo); e.valu("v_fma_f32", hi, acc[0][t][2 * p + 1], rstd, hi)
        e.valu("v_cvt_pk_bf16_f32", ot[2 * t + p], lo, hi)
    e.bstore(ot[2 * t:2 * t + 2], vro, OS, sRo, 32 * t)
lab = "L_noep"
e.salu("s_or_b32", sT[0], S(2), sW); e.scmp("s_cmp_lg_u32", sT[0], 0); e.branch("s_cbranch_scc1", lab)
e.salu("s_mov_b64", EXEC, 1)
e.bstore(vtag, zero, WS, 0, EPOCH, "sc1")
e.salu("s_mov_b64", EXEC, -1)
e.label(lab)
if DIAG:
    e.wait(vm="all"); stamp("end"); e.wait(lg="all")
    e.salu("s_lshl_b32", sT[0], S(2), 2); sadd(sT[0], sT[0], sW); smad(sT[0], sT[0], 128, STAMP + 0x0)
    setexec(0xffffffff)
    e.bstore(vST, l4, WS, sT[0], 0)
    open("stamps.txt", "w").write("\n".join(stamps))
e.label("L_end")

hdr = open("cdna_kernels/%s.s.ref" % NAME).read().split("; Override launch geometry")[0]
out = hdr + f"""; @launch grid=(256,1,1) block=(256,1,1) lds=163840
.amdgcn_target "amdgcn-amd-amdhsa--gfx950"
.text
.globl {NAME}_kernel
.p2align 8
.type {NAME}_kernel,@function
{NAME}_kernel:
{e.text()}
    s_endpgm
.section .rodata,"a"
.p2align 6
.amdhsa_kernel {NAME}_kernel
  .amdhsa_next_free_vgpr 512
  .amdhsa_next_free_sgpr 102
  .amdhsa_accum_offset 256
  .amdhsa_group_segment_fixed_size 0
  .amdhsa_kernarg_size 80
  .amdhsa_user_sgpr_count 2
  .amdhsa_user_sgpr_kernarg_segment_ptr 1
  .amdhsa_system_sgpr_workgroup_id_x 1
.end_amdhsa_kernel
"""
open(sys.argv[1], "w").write(out)
print("vgpr hw", v.hw, "agpr hw", a.hw, "sgpr hw", sg.hw, "lines", len(e.L), "nops", e.nops, file=sys.stderr)
```

```python
import sys
from emit import *

NAME = "sequential_preLN__linear_kernel_hedgehog__dense_activation_relu__prompt"
DIAG = int(sys.argv[2]) if len(sys.argv) > 2 else 0
OPT = dict(kv.split("=") for kv in sys.argv[3:])
def opt(k, d): return type(d)(OPT.get(k, d))

EPOCH = 0; FLAGS = 0x10000; KVACC = 0x40000; CS1 = 0x60000; ST2 = 0x70000; STAMP = 0x90000
XN = 0x100000; WQKV = 0x400000; WO = 0x700000; W1 = 0x800000; W2 = 0xB00000
OP = 0xE00000; HP = 0x1100000; H1 = 0x1400000
F_P0, F_PK, F_KV, F_O, F_H, F_H1 = range(6)
KB = 1024
QREG = 100 * KB
SCRW = QREG; SCR2 = 0x1C000; LNX = 0x24000; WPH = 0x24100
ROWB = 296
LOG2E = "0x3fb8aa3b"
OOB = "0x40000000"
SPIN = 200000
BL = opt("bl", "sc1").replace("none", "").replace("+", " ")

e = Emit()
v = e.v; a = e.a; sg = e.s
for q in range(4, 24): sg.free[q] = False
for q in (96, 97): sg.free[q] = False
pX, pWQKV, pWPHI, pWO, pBX, pW1, pW2, pOUT, pDBG, pWS = [S(4 + 2 * q, 2) for q in range(10)]
WS = sg.get(4); XS = sg.get(4); QS = sg.get(4); PS = sg.get(4); K2 = sg.get(4); OS = sg.get(4)
TAG = sg.get(2); sI = sg.get(); sJ = sg.get(); sW = sg.get()
sT = [sg.get() for _ in range(8)]
sEX = sg.get(2); sSPIN = sg.get(); sFast = sg.get(); sXcc = sg.get()
stamps = []
sST = sg.get(2); vST = v.get()
def setexec(m):
    if m in (-1, 1) or (0 <= m < 2**31): e.salu("s_mov_b64", EXEC, m if m in (-1, 1) else hex(m))
    else:
        e.ins("salu", "s_mov_b32", f"s_mov_b32 exec_lo, {hex(m & 0xffffffff)}", [], [EXEC]); e.ins("salu", "s_mov_b32", f"s_mov_b32 exec_hi, {hex(m >> 32)}", [], [EXEC])
def stamp(name):
    if not DIAG: return
    e.memtime(sST); e.wait(lg="all")
    e.ins("valu", "v_writelane_b32", f"v_writelane_b32 {vST}, {sST[0]}, {len(stamps)}", [sST[0], vST], [vST]); stamps.append(name)
def srd(d, p, n):
    e.salu("s_mov_b32", d[0], p[0]); e.salu("s_and_b32", d[1], p[1], "0xffff"); e.salu("s_mov_b32", d[2], n); e.salu("s_mov_b32", d[3], "0x20000")
def smov(d, x): e.salu("s_mov_b32", d, x)
def sadd(d, x, y): e.salu("s_add_u32", d, x, y)
def smul(d, x, y): e.salu("s_mul_i32", d, x, y)
def sshl(d, x, y): e.salu("s_lshl_b32", d, x, y)
def sshr(d, x, y): e.salu("s_lshr_b32", d, x, y)
def sand(d, x, y): e.salu("s_and_b32", d, x, y)
def smad(d, x, m, c): smul(d, x, m); sadd(d, d, c)
def ssel(d, x, y): e.salu("s_cselect_b32", d, x, y)
def vmov(d, x): e.valu("v_mov_b32", d, x)
def cvt(d, x, y): e.valu("v_cvt_pk_bf16_f32", d, x, y)

e.scmp("s_cmp_ge_u32", S(2), 256); e.branch("s_cbranch_scc1", "L_end")
e.smem("s_load_dwordx16", S(4, 16), S(0, 2), 0)
e.smem("s_load_dwordx4", S(20, 4), S(0, 2), 64)
lane = v.get(); l16 = v.get(); l4 = v.get(); l8 = v.get(); vg = v.get(); vt = v.get(); t0 = v.get(); t1 = v.get(); t2 = v.get()
ldsb = [l16, v.get(), v.get()]
e.valu("v_and_b32", lane, 63, V(0))
e.valu("v_lshrrev_b32", t0, 6, V(0))
e.valu("v_lshlrev_b32", l16, 4, lane)
e.rfl(sW, t0)
e.valu("v_lshlrev_b32", l4, 2, lane); e.valu("v_lshlrev_b32", l8, 3, lane)
e.valu("v_lshrrev_b32", vg, 4, lane)
e.valu("v_and_b32", vt, 15, lane)
e.valu("v_add_u32", ldsb[1], "0x10000", l16)
e.valu("v_add_u32", ldsb[2], "0x20000", l16)
sand(sT[0], S(2), 7); sshl(sT[0], sT[0], 1)
e.salu("s_bfe_u32", sT[1], S(2), "0x10003"); sadd(sI, sT[0], sT[1]); sshr(sJ, S(2), 4)
e.ins("salu", "s_getreg_b32", f"s_getreg_b32 {sXcc}, hwreg(HW_REG_XCC_ID)", [], [sXcc])
vx = v.get(); vx3 = v.get()
e.valu("v_and_b32", t0, 7, lane); e.valu("v_lshrrev_b32", t1, 3, lane)
e.valu("v_mul_u32_u24", vx, 1280, t0); e.valu("v_lshl_add_u32", vx, t1, 4, vx)
sshl(sT[0], sW, 7); e.valu("v_add_u32", vx, sT[0], vx)
e.scmp("s_cmp_ge_u32", sW, 2); ssel(sT[1], OOB, 0); e.valu("v_add_u32", vx3, sT[1], vx)
wo_ = [v.get() for _ in range(3)]
for q in range(3):
    sshl(sT[3], sW, 6); sadd(sT[3], sT[3], 256 * q)
    e.valu("v_add_u32", t0, sT[3], lane)
    e.valu("v_mul_u32_u24", t1, 4370, t0); e.valu("v_lshrrev_b32", t1, 16, t1)
    e.valu("v_mul_u32_u24", t2, 15, t1); e.valu("v_sub_u32", t0, t0, t2)
    e.valu("v_mul_u32_u24", t1, 3840, t1); e.valu("v_lshl_add_u32", t1, t0, 4, t1)
    e.valu("v_mul_u32_u24", t0, 13, t0); e.valu("v_lshrrev_b32", t0, 6, t0)
    e.valu("v_mul_u32_u24", t0, 1200, t0); e.valu("v_add_u32", wo_[q], t1, t0)
sRow = sT[2]
sshl(sT[0], sI, 7); sshl(sT[1], sJ, 3); sadd(sT[0], sT[0], sT[1]); smul(sRow, sT[0], 1280)
smul(sT[0], sI, 40 * 3840); smad(sT[1], sJ, 80, sT[0]); sshl(sT[3], sW, 10)
stamp("start")
e.wait(lg="all")
srd(XS, pX, 2621440)
xr = [v.get(4) for _ in range(3)]
tx = [e.bload(xr[0], vx, XS, sRow, 0), e.bload(xr[1], vx, XS, sRow, 512), e.bload(xr[2], vx3, XS, sRow, 1024)]
srd(QS, pWQKV, 2457600)
for q in range(3):
    e.salu("s_add_u32", M0, sT[3], SCRW + 4096 * q)
    tw = e.bdma(wo_[q], QS, sT[1], 0)
v.put(wo_)
e.smem("s_load_dwordx2", TAG, pWS, EPOCH)
srd(WS, pWS, 256 << 20)
e.misc("s_getpc_b64 s[96:97]")
e.valu("v_lshlrev_b32", t0, 7, V(0))
cp = v.get()
for q in range(opt("cpf", 2)):
    e.gload(cp, t0, S(96, 2)); e.valu("v_add_u32", t0, "0x8000", t0)
srd(PS, pWPHI, 25600)
smad(sT[0], sJ, 1600, sT[3]); e.scmp("s_cmp_ge_u32", sW, 2); ssel(sT[0], OOB, sT[0])
e.salu("s_add_u32", M0, sT[3], WPH)
e.bdma(l16, PS, sT[0], 0)
sU = sg.get(); sCG = sg.get(); sStr = sg.get(); sUB = sg.get()
lw2, lwo, lgo = "L_u_w2", "L_u_wo", "L_u_go"
e.scmp("s_cmp_ge_u32", S(2), 108); e.branch("s_cbranch_scc1", lw2)
srd(K2, pW1, 2211840); sand(sU, S(2), 3); sshr(sCG, S(2), 2); smov(sStr, 3456); smul(sUB, sU, 160 * 3456)
e.branch("s_branch", lgo)
e.label(lw2)
e.scmp("s_cmp_ge_u32", S(2), 188); e.branch("s_cbranch_scc1", lwo)
srd(K2, pW2, 2211840); e.salu("s_sub_u32", sT[0], S(2), 108); sand(sU, sT[0], 7); sshr(sCG, sT[0], 3); smov(sStr, 1280)
smul(sUB, sU, 224 * 1280); e.scmp("s_cmp_eq_u32", sU, 7); ssel(sUB, 1536 * 1280, sUB)
e.branch("s_branch", lgo)
e.label(lwo)
srd(K2, pWO, 819200); e.salu("s_sub_u32", sT[0], S(2), 188); sand(sU, sT[0], 3); sshr(sCG, sT[0], 2); smov(sStr, 1280)
smul(sUB, sU, 160 * 1280)
e.scmp("s_cmp_ge_u32", S(2), 228); ssel(sUB, OOB, sUB)
e.label(lgo)
sshl(sT[0], sCG, 7); sadd(sUB, sUB, sT[0])
vp2 = v.get()
e.valu("v_lshrrev_b32", vp2, 3, lane); e.valu("v_mul_lo_u32", vp2, vp2, sStr); e.valu("v_and_b32", t1, 7, lane); e.valu("v_lshl_add_u32", vp2, t1, 4, vp2)
def pack2_loads():
    sshl(sT[4], sStr, 3)
    smul(sT[0], sT[4], sW); sadd(sT[0], sT[0], sUB); sshl(sT[4], sT[4], 2)
    sshl(sT[3], sW, 10)
    for q in range(7):
        e.salu("s_add_u32", M0, sT[3], SCR2 + 4096 * q)
        t = e.bdma(vp2, K2, sT[0], 0)
        if q < 6: sadd(sT[0], sT[0], sT[4])
    return t
if opt("p2early", 1): tp2 = pack2_loads()
srd(OS, pOUT, 2621440)

ones = v.get(); vmov(ones, "0x3f803f80")
s1 = v.get(2)
colq = v.get()
tab = {0: [80 + 8 * c for c in range(4)], 1: [120 + 8 * c for c in range(4)], 2: [112, 152, 192, 232], 3: [160 + 8 * c for c in range(4)],
       4: [200 + 8 * c for c in range(4)], 5: [8 * c for c in range(4)], 6: [40 + 8 * c for c in range(4)], 7: [32, 72, 32, 72]}
def pack4(x): return hex(x[0] | x[1] << 8 | x[2] << 16 | x[3] << 24)
sand(sT[3], sW, 1)
for c in range(4):
    e.scmp("s_cmp_eq_u32", sT[3], 0)
    smov(sT[6], pack4([tab[4 + g][c] for g in range(4)]))
    ssel(sT[4 + (c & 1)], pack4([tab[g][c] for g in range(4)]), sT[6])
    if c == 0: vmov(colq, sT[4])
    else:
        e.valu("v_and_b32", t1, 3, lane); e.valu("v_cmp_eq_u32", VCC, c, t1); vmov(t2, sT[4 + (c & 1)]); e.valu("v_cndmask_b32", colq, colq, t2)
e.valu("v_lshlrev_b32", t1, 3, vg); e.valu("v_lshrrev_b32", colq, t1, colq); e.valu("v_and_b32", colq, "0xff", colq)
e.valu("v_bfe_u32", t1, lane, 2, 2); e.valu("v_mul_u32_u24", t1, 240, t1); e.valu("v_add_u32", colq, colq, t1)
sshr(sT[4], sW, 1); smad(sT[5], sT[4], 8 * 240, SCRW); e.valu("v_add_u32", colq, sT[5], colq)
lnw = v.get(); lnr = v.get(); xo = v.get(); xo3 = v.get(); vmul = v.get(); vbas = v.get()
e.valu("v_and_b32", t0, 7, lane); e.valu("v_and_b32", t1, 16, lane); e.valu("v_lshlrev_b32", t0, 2, t0); e.valu("v_lshl_add_u32", t1, t1, 1, t0)
sshl(sT[0], sW, 6); sadd(sT[0], sT[0], LNX); e.valu("v_add_u32", lnw, sT[0], t1); e.valu("v_add_u32", lnr, LNX, t0)
e.valu("v_lshrrev_b32", t1, 3, lane); e.valu("v_lshlrev_b32", t1, 8, t1); e.valu("v_and_b32", t2, 7, lane); e.valu("v_lshl_add_u32", xo, t2, 4, t1)
e.scmp("s_cmp_ge_u32", sW, 2); ssel(sT[1], OOB, 0); e.valu("v_add_u32", xo3, sT[1], xo)
sand(sT[3], sW, 1); sshl(sT[3], sT[3], 2); e.valu("v_add_u32", t0, sT[3], vg)
e.valu("v_cmp_gt_u32", VCC, 5, t0)
vmov(t1, 3 * KB); vmov(t2, 5 * KB); e.valu("v_cndmask_b32", vmul, t1, t2)
vmov(t1, 95 * KB); vmov(t2, 0); e.valu("v_cndmask_b32", vbas, t1, t2)
e.valu("v_lshl_add_u32", vbas, t0, 10, vbas); e.valu("v_lshl_add_u32", vbas, vt, 4, vbas)
z4 = v.get(4)
for r in range(4): vmov(z4[r], 0)
zero = v.get(); vmov(zero, 0)
sFl = sg.get()
sshl(sFl, sI, 4); sadd(sFl, sFl, sJ); smad(sFl, sFl, 128, FLAGS)
sshl(sT[0], sJ, 13); sshl(sT[1], sI, 9); sadd(sT[0], sT[0], sT[1]); sadd(sT[0], sT[0], KVACC)
e.scmp("s_cmp_eq_u32", sW, 3); ssel(sT[0], sT[0], OOB)
setexec(0xffffffff)
e.bstore(z4, l16, WS, sT[0], 0, "sc1")
setexec(-1)
vmov(s1[0], 0); vmov(s1[1], 0)
e.wait(vm=tx[2])
stamp("x_arrived")
for q in range(3):
    for r in range(4): e.valu("v_dot2_f32_bf16", s1[0], xr[q][r], ones, s1[0])
for q in range(3):
    for r in range(4): e.valu("v_dot2_f32_bf16", s1[1], xr[q][r], xr[q][r], s1[1])
DPP8 = "row_ror:8 row_mask:0xf bank_mask:0xf"
e.valu("v_add_f32", s1[0], s1[0], s1[0], mods=DPP8); e.valu("v_add_f32", s1[1], s1[1], s1[1], mods=DPP8)
e.perm("v_permlane16_swap_b32", s1[0], s1[1]); e.valu("v_add_f32", s1[0], s1[0], s1[1])
vmov(s1[1], s1[0]); e.perm("v_permlane32_swap_b32", s1[0], s1[1]); e.valu("v_add_f32", s1[0], s1[0], s1[1])
e.dsw(lnw, s1[0])
e.wait(vm=tw, lg="all")
e.barrier()
stamp("w_arrived")
st = v.get(8)
for q in range(8): e.dsr(st[q], lnr, 32 * q)
wq = [v.get(4) for _ in range(3)]
for q in range(3):
    e.dstr(wq[q][0:2], colq, q * 16 * 240); e.dstr(wq[q][2:4], colq, q * 16 * 240 + 4 * 240)
e.salu("s_add_u32", TAG[0], TAG[0], 1); e.salu("s_addc_u32", TAG[1], TAG[1], 0)
vtag = v.get(4); vmov(vtag[0], TAG[0]); vmov(vtag[1], TAG[1]); vmov(vtag[2], sXcc); vmov(vtag[3], 0)
smad(sT[6], sJ, 160 * KB, WQKV)
smul(sT[0], sI, 5); sshr(sT[1], sW, 1); sadd(sT[0], sT[0], sT[1])
e.wait(lg="all")
for q in range(3):
    sshr(sT[1], sT[0], 2); sand(sT[2], sT[0], 3); sshl(sT[2], sT[2], 8); sadd(sT[2], sT[2], sT[6])
    if q == 2:
        e.scmp("s_cmp_ge_u32", sW, 2); ssel(sT[2], OOB, sT[2])
    e.valu("v_mad_u32_u24", t0, vmul, sT[1], vbas)
    e.bstore(wq[q], t0, WS, sT[2], 0, "sc1")
    sadd(sT[0], sT[0], 2)
for q in (2, 4, 6): e.valu("v_add_f32", st[0], st[0], st[q]); e.valu("v_add_f32", st[1], st[1], st[q + 1])
vmov(t1, hex(0x3acccccd))
e.valu("v_mul_f32", st[0], st[0], t1); e.valu("v_mul_f32", st[1], st[1], t1)
e.valu("v_fma_f32", st[1], Neg(st[0]), st[0], st[1]); e.valu("v_max_f32", st[1], 0, st[1]); e.valu("v_add_f32", st[1], "0x3727c5ac", st[1])
e.valu("v_rsq_f32", st[1], st[1]); e.valu("v_mul_f32", st[0], st[0], st[1])
sshl(sT[0], sI, 3); sshr(sT[1], sJ, 1); sadd(sT[0], sT[0], sT[1]); smad(sT[0], sT[0], 20 * KB, XN)
sand(sT[1], sJ, 1); sshl(sT[1], sT[1], 7); sadd(sT[0], sT[0], sT[1])
sshl(sT[1], sW, 11); sadd(sT[0], sT[0], sT[1])
lo = v.get(); hi = v.get()
for q in range(3):
    for r in range(4):
        e.valu("v_lshlrev_b32", lo, 16, xr[q][r]); e.valu("v_and_b32", hi, "0xffff0000", xr[q][r])
        e.valu("v_fma_f32", lo, lo, st[1], Neg(st[0])); e.valu("v_fma_f32", hi, hi, st[1], Neg(st[0]))
        cvt(xr[q][r], lo, hi)
    tst = e.bstore(xr[q], xo if q < 2 else xo3, WS, sT[0], 0, "sc1")
    if q < 2: sadd(sT[0], sT[0], 8192)
if not opt("p2early", 1): tp2 = pack2_loads()
v.put(st, s1, vx, vx3, vmul, vbas, colq, lnw, lnr, xo, xo3, vp2)

def flag_wg(stage):
    lab = e.newlabel("L_pub")
    e.scmp("s_cmp_lg_u32", sW, 0); e.branch("s_cbranch_scc1", lab)
    sadd(sT[7], sFl, stage * 0x8000)
    setexec(1)
    e.bstore(vtag, zero, WS, sT[7], 0, "sc1"); e.vm -= 1
    setexec(-1)
    e.label(lab)

def dual(fn):
    slow = e.newlabel("L_sl"); done = e.newlabel("L_dn")
    if not opt("fast", 1): return fn("sc1")
    e.scmp("s_cmp_eq_u32", sFast, 0); e.branch("s_cbranch_scc1", slow)
    vm0 = e.vm; vd = e.vm_done
    fn("")
    e.branch("s_branch", done)
    e.label(slow); e.vm = vm0; e.vm_done = vd
    r = fn("sc1")
    e.label(done)
    return r

def flag_wave(stage, fl):
    sshl(sT[7], sW, 5); sadd(sT[7], sT[7], sFl); sadd(sT[7], sT[7], stage * 0x8000)
    setexec(1)
    e.bstore(vtag[0:2], zero, WS, sT[7], 0, fl)
    setexec(-1)

pv = v.get(4)
def spin(stage, voff, execmask, n=2, first=None, soff=None):
    top = e.newlabel("L_pt"); nxt = e.newlabel("L_pn"); chk = e.newlabel("L_pc")
    setexec(execmask); smov(sSPIN, SPIN)
    so = sT[7]
    if soff is None: smov(sT[7], FLAGS + stage * 0x8000)
    else: so = soff
    if first is not None:
        e.wait(vm=first); e.branch("s_branch", chk)
    e.label(top)
    e.bload(pv[0:n], voff, WS, so, 0, "sc1"); e.vm -= 1
    e.misc("s_waitcnt vmcnt(0)")
    e.label(chk)
    e.valu("v_cmp_ne_u64", VCC, TAG, pv[0:2])
    e.branch("s_cbranch_vccz", nxt)
    e.salu("s_sub_u32", sSPIN, sSPIN, 1); e.scmp("s_cmp_lg_u32", sSPIN, 0)
    e.branch("s_cbranch_scc1", top)
    e.label(nxt)
    if first is None: e.vm_done = e.vm

pass
e.wait(vm=tst); e.barrier(); flag_wg(F_P0)
stamp("p0_pub")
v.put(xr, wq, z4)
vrc = v.get(); vfl = v.get()
sshl(sT[0], sI, 11); e.valu("v_lshl_add_u32", t0, vt, 7, sT[0])
sshl(sT[0], sJ, 7); e.valu("v_lshl_add_u32", t1, vt, 11, sT[0])
e.valu("v_cmp_eq_u32", VCC, 0, vg); e.valu("v_cndmask_b32", vrc, t1, t0)
xf = [[a.get(4) for s in range(20)] for n_ in range(2)]
sWq = sg.get(); sXn = sg.get(); sO = sg.get()
smad(sWq, sJ, 160 * KB, WQKV)
sshl(sT[0], sI, 3); sshl(sT[1], sW, 1); sadd(sO, sT[0], sT[1]); smad(sXn, sO, 20 * KB, XN)
spin(F_P0, vrc, 0xffffffff, n=4)
setexec(0xffff)
e.valu("v_cmp_ne_u32", VCC, sXcc, pv[2])
setexec(-1)
e.ins("salu", "s_cmp_eq_u64", "s_cmp_eq_u64 vcc, 0", [VCC], []); ssel(sFast, 1, 0)
stamp("p0_sync")
v.put(vrc)

def dma_run(sbase, first, count_per_wave, lds_first, fl="sc1"):
    smul(sT[6], sW, count_per_wave * KB)
    tok = None
    for q in range(0, count_per_wave, 4):
        sadd(sT[5], sT[6], sbase); sadd(sT[5], sT[5], (first + q) * KB)
        e.salu("s_add_u32", M0, sT[6], (lds_first + q) * KB)
        for r in range(min(4, count_per_wave - q)):
            tok = e.bdma(l16, WS, sT[5], r * KB, fl)
    return tok

def gemm(nsteps, nM, Bof, acc, slot_addr, LA, ready=None, bwait=None):
    sets = [[v.get(4) for _ in range(nM)] for _ in range(LA + 1)]
    tok = {}
    def rd(s, tau):
        ad = slot_addr(s, tau); tok[(s, tau)] = e.dsr(sets[s % (LA + 1)][tau], ldsb[ad >> 16], ad & 0xffff)
    for s in range(min(LA, nsteps)):
        if ready: ready(s)
        for tau in range(nM): rd(s, tau)
    for s in range(nsteps):
        if s + LA < nsteps and ready: ready(s + LA)
        if bwait: bwait(s)
        B = Bof(s)
        for tau in range(nM):
            e.wait(lg=tok[(s, tau)])
            for n_, b in enumerate(B):
                e.mfma(acc[n_][tau], sets[s % (LA + 1)][tau], b, 0 if s == 0 else acc[n_][tau])
            if s + LA < nsteps: rd(s + LA, tau)
    v.put(sets)

def reduce4(vals, op, post=None):
    a_, b_, c_, d_ = vals
    e.perm("v_permlane16_swap_b32", a_, b_); e.perm("v_permlane16_swap_b32", c_, d_)
    e.valu(op, a_, a_, b_); e.valu(op, c_, c_, d_)
    e.perm("v_permlane32_swap_b32", a_, c_); e.valu(op, a_, a_, c_)
    if post: post(a_)
    vmov(c_, a_); e.perm("v_permlane32_swap_b32", a_, c_)
    vmov(b_, a_); vmov(d_, c_)
    e.perm("v_permlane16_swap_b32", a_, b_); e.perm("v_permlane16_swap_b32", c_, d_)

sL = sg.get(); smov(sL, LOG2E)
wphi = {}
def feature_map(acc, T0, T1, T2):
    Bk = [[v.get(4) for h in range(2)] for n_ in range(2)]
    for n_ in range(2):
        for h in range(2):
            src = acc[n_][T0 if h == 0 else T1]
            cvt(Bk[n_][h][0], src[0], src[1]); cvt(Bk[n_][h][1], src[2], src[3])
            s2 = acc[n_][T2]
            cvt(Bk[n_][h][2], s2[0], s2[1]); cvt(Bk[n_][h][3], s2[2], s2[3])
    DA = [[v.get(4) for h in range(2)] for n_ in range(2)]; DB = [v.get(4) for n_ in range(2)]
    for n_ in range(2):
        for h in range(2): e.mfma(DA[n_][h], wphi[(h, 0)], Bk[n_][h], 0)
    for h in range(2):
        for n_ in range(2): e.mfma(DB[n_], wphi[(h, 1)], Bk[n_][h], 0 if h == 0 else DB[n_])
    v.put(Bk)
    U = [(n_, h) for n_ in range(2) for h in range(2)]
    P = {u: [DA[u[0]][u[1]][r] for r in range(4)] + [DB[u[0]][u[1]]] for u in U}
    mx = {u: [v.get(), v.get()] for u in U}
    for u in U:
        p = P[u]
        e.valu("v_max3_f32", mx[u][0], p[0], p[1], p[2]); e.valu("v_max3_f32", mx[u][1], Neg(p[0]), Neg(p[1]), Neg(p[2]))
    for u in U:
        p = P[u]
        e.valu("v_max3_f32", mx[u][0], mx[u][0], p[3], p[4]); e.valu("v_max3_f32", mx[u][1], mx[u][1], Neg(p[3]), Neg(p[4]))
    for n_ in range(2):
        reduce4(mx[(n_, 0)] + mx[(n_, 1)], "v_max_f32", post=lambda r: e.valu("v_mul_f32", r, sL, r))
    E = {u: [v.get(5, 1), v.get(5, 1)] for u in U}
    for u in U:
        for q in range(5):
            e.valu("v_fma_f32", E[u][0][q], P[u][q], sL, Neg(mx[u][0])); e.valu("v_fma_f32", E[u][1][q], Neg(P[u][q]), sL, Neg(mx[u][1]))
        for q in range(5):
            e.valu("v_exp_f32", E[u][0][q], E[u][0][q]); e.valu("v_exp_f32", E[u][1][q], E[u][1][q])
    v.put(DA, DB)
    for u in U:
        for sgn in range(2): e.valu("v_add_f32", mx[u][sgn], E[u][sgn][0], E[u][sgn][1])
        for q in range(2, 5):
            for sgn in range(2): e.valu("v_add_f32", mx[u][sgn], mx[u][sgn], E[u][sgn][q])
    for n_ in range(2):
        reduce4(mx[(n_, 0)] + mx[(n_, 1)], "v_add_f32", post=lambda r: e.valu("v_rcp_f32", r, r))
    blk = v.get(26, 2)
    phi = [[blk[12 * n_ + 6 * h: 12 * n_ + 6 * h + 6] for h in range(2)] for n_ in range(2)]
    for u in U:
        for sgn in range(2):
            for q in range(5): e.valu("v_mul_f32", E[u][sgn][q], E[u][sgn][q], mx[u][sgn])
        o = phi[u[0]][u[1]]
        cvt(o[0], E[u][0][0], E[u][0][1]); cvt(o[1], E[u][0][2], E[u][0][3])
        cvt(o[2], E[u][1][0], E[u][1][1]); cvt(o[3], E[u][1][2], E[u][1][3])
        cvt(o[4], E[u][0][4], E[u][1][4]); vmov(o[5], 0)
    vmov(blk[24], 0); vmov(blk[25], 0)
    for u in U: v.put(E[u], mx[u])
    return phi, blk

ctok = {}
def issue_chunk(q):
    dma_run(sWq, 20 * q, 5, 20 * q)
    for n_ in range(2):
        sadd(sT[5], sXn, n_ * 20 * KB + 4 * q * KB)
        for r in range(4): ctok[q] = e.bload(xf[n_][4 * q + r], l16, WS, sT[5], r * KB, "sc1")
for q in range(4): issue_chunk(q)
e.barrier()
wtmp = v.get(32)
vA = v.get(); vA2 = [v.get(), v.get()]; vB = [v.get(), v.get()]; vB2 = [v.get(), v.get()]
e.valu("v_mul_u32_u24", vA, 160, vg); e.valu("v_lshl_add_u32", vA, vt, 1, vA); e.valu("v_add_u32", vA, WPH, vA)
e.valu("v_lshrrev_b32", t0, 2, vt); e.valu("v_lshlrev_b32", t0, 1, t0); e.valu("v_add_u32", t0, WPH + 32, t0)
e.valu("v_and_b32", t1, 3, vt)
oobv = v.get(); vmov(oobv, WPH + 2048)
for h in range(2):
    e.valu("v_lshlrev_b32", t2, 1, vt); e.valu("v_add_u32", t2, WPH, t2)
    e.valu("v_cmp_eq_u32", VCC, h, vg); e.valu("v_cndmask_b32", vA2[h], oobv, t2)
    e.valu("v_cndmask_b32", vB2[h], oobv, t0)
    e.valu("v_mul_u32_u24", t2, 160, vg); e.valu("v_add_u32", t2, t2, t0)
    e.valu("v_cmp_eq_u32", VCC, h, t1); e.valu("v_cndmask_b32", vB[h], oobv, t2); e.valu("v_cndmask_b32", vB2[h], oobv, vB2[h])
n = 0
for h in range(2):
    for tl in range(2):
        for jj in range(8):
            vo = (vA if jj < 4 else vA2[h]) if tl == 0 else (vB[h] if jj < 4 else vB2[h])
            d = jj if jj < 4 else 16 + jj - 4
            e.dsr(wtmp[n], vo, 800 * h + 40 * d, op="ds_read_u16"); n += 1
        e.wait(lg="all")
        wphi[(h, tl)] = v.get(4)
        for r in range(4): e.valu("v_lshl_or_b32", wphi[(h, tl)][r], wtmp[n - 8 + 2 * r + 1], 16, wtmp[n - 8 + 2 * r])
v.put(vA, vA2, vB, vB2, oobv, wtmp)

trb = v.get(); fr = [v.get(4) for _ in range(7)]
e.valu("v_lshrrev_b32", t0, 2, lane); e.valu("v_lshlrev_b32", t0, 7, t0); e.valu("v_and_b32", t1, 3, lane); e.valu("v_lshl_add_u32", trb, t1, 3, t0)
sshl(sT[0], sW, 5); sadd(sT[0], sT[0], SCR2); e.valu("v_add_u32", trb, sT[0], trb)
sshl(sT[1], sCG, 2); sadd(sT[1], sT[1], sW)
lp_w2, lp_wo, lp_done = "L_p_w2", "L_p_wo", "L_p_done"
vm_save = e.vm
NPK = 7
def pk_reads(rows, base=None):
    for q, (r0, r1) in enumerate(rows):
        b = trb if base is None or q < len(rows) - 1 else base
        e.dstr(fr[q][0:2], b, r0 * 128); e.dstr(fr[q][2:4], b, r1 * 128)
def pad_stores():
    smov(sT[3], OOB)
    while e.vm < vm_save + NPK: e.bstore(zero, zero, WS, sT[3], 0)
    e.vm = vm_save
def div_small(d, x, m, sh): smul(d, x, m); sshr(d, d, sh)
e.scmp("s_cmp_ge_u32", S(2), 108); e.branch("s_cbranch_scc1", lp_w2)
pk_reads([(80 * (q >> 1) + 32 * (q & 1), 80 * (q >> 1) + 32 * (q & 1) + 16) for q in range(4)] + [(64, 144)])
div_small(sT[2], sT[1], 9363, 16)
smul(sT[3], sT[2], 7); e.salu("s_sub_u32", sT[3], sT[1], sT[3])
e.salu("s_sub_u32", sT[4], sT[1], 84); div_small(sT[5], sT[4], 10923, 16); smul(sT[6], sT[5], 6); e.salu("s_sub_u32", sT[4], sT[4], sT[6]); sadd(sT[5], sT[5], 12)
e.scmp("s_cmp_ge_u32", sT[1], 84); ssel(sT[2], sT[5], sT[2]); ssel(sT[3], sT[4], sT[3])
smad(sT[2], sT[2], 140 * KB, W1); sshl(sT[3], sT[3], 10); sadd(sT[2], sT[2], sT[3])
csa = v.get(4); o4 = v.get(4)
for r in range(4): vmov(o4[r], ones)
e.wait(lg="all")
for q in range(5):
    if q < 4: smad(sT[3], sU, 28 * KB, q * 7 * KB)
    else: smad(sT[3], sU, 7 * KB, 16 * 7 * KB)
    sadd(sT[3], sT[3], sT[2]); e.bstore(fr[q], l16, WS, sT[3], 0, "sc1")
    e.mfma(csa, fr[q], o4, 0 if q == 0 else csa)
sshl(sT[3], sU, 13); sshl(sT[4], sT[1], 6); sadd(sT[3], sT[3], sT[4]); sadd(sT[3], sT[3], CS1)
e.valu("v_lshlrev_b32", t0, 4, vg)
setexec(0x0001000100010001)
e.bstore(csa, t0, WS, sT[3], 0, "sc1")
setexec(-1)
v.put(csa, o4)
pad_stores(); e.branch("s_branch", lp_done)
e.label(lp_w2)
e.scmp("s_cmp_ge_u32", S(2), 188); e.branch("s_cbranch_scc1", lp_wo)
div_small(sT[2], sT[1], 13108, 16); smul(sT[3], sT[2], 5); e.salu("s_sub_u32", sT[3], sT[1], sT[3])
smad(sT[2], sT[2], 270 * KB, W2); sshl(sT[3], sT[3], 10); sadd(sT[2], sT[2], sT[3])
lp_w2b = "L_p_w2b"
e.scmp("s_cmp_ge_u32", sU, 6); e.branch("s_cbranch_scc1", lp_w2b)
pk_reads([(112 * (q // 3) + 32 * (q % 3), 112 * (q // 3) + 32 * (q % 3) + 16) for q in range(6)] + [(96, 208)])
e.wait(lg="all")
for q in range(7):
    if q < 6: smad(sT[3], sU, 30 * KB, q * 5 * KB)
    else: smad(sT[3], sU, 5 * KB, 48 * 5 * KB)
    sadd(sT[3], sT[3], sT[2]); e.bstore(fr[q], l16, WS, sT[3], 0, "sc1")
pad_stores(); e.branch("s_branch", lp_done)
e.label(lp_w2b)
pk_reads([(32 * q, 32 * q + 16) for q in range(6)])
e.wait(lg="all")
for q in range(6):
    smad(sT[3], sU, 30 * KB, q * 5 * KB); sadd(sT[3], sT[3], sT[2]); e.bstore(fr[q], l16, WS, sT[3], 0, "sc1")
pad_stores(); e.branch("s_branch", lp_done)
e.label(lp_wo)
lb = v.get()
e.valu("v_bfe_u32", t0, lane, 3, 1); e.valu("v_mul_u32_u24", t0, 40, t0); e.valu("v_bfe_u32", t1, lane, 2, 1); e.valu("v_mul_u32_u24", t1, 20, t1)
e.valu("v_add3_u32", t0, t0, t1, vg); e.valu("v_lshlrev_b32", t0, 7, t0); e.valu("v_and_b32", t1, 3, lane); e.valu("v_lshl_add_u32", lb, t1, 3, t0)
e.valu("v_add_u32", lb, sT[0], lb)
pk_reads([(40 * q, 40 * q + 20) for q in range(4)] + [(16, 96)], base=lb)
div_small(sT[2], sT[1], 13108, 16); smul(sT[3], sT[2], 5); e.salu("s_sub_u32", sT[3], sT[1], sT[3])
smad(sT[2], sT[2], 100 * KB, WO); sshl(sT[3], sT[3], 10); sadd(sT[2], sT[2], sT[3])
e.scmp("s_cmp_ge_u32", S(2), 228); ssel(sT[2], OOB, sT[2])
e.wait(lg="all")
for q in range(5):
    if q < 4: smad(sT[3], sU, 20 * KB, q * 5 * KB)
    else: smad(sT[3], sU, 5 * KB, 16 * 5 * KB)
    sadd(sT[3], sT[3], sT[2]); e.bstore(fr[q], l16, WS, sT[3], 0, "sc1")
v.put(lb)
pad_stores()
e.label(lp_done)
e.nop(2)
e.vm = vm_save + NPK; tpk = e.vm
v.put(trb, fr); sg.put(sU, sCG, sStr, sUB)
stamp("pack2_done")

wq_tok = [None]; pk_tok = [None]
sPk = sg.get()
def ready_kv(s):
    if s % 4: return
    q = s // 4
    e.wait(vm=ctok[q] if q != 3 else tpk); e.barrier()
    if q == 0:
        pass
    if q == 1: issue_chunk(4)
    if q == 2: wq_tok[0] = dma_run(sWq, 100, 15, 100)
    if q == 3: flag_wg(F_PK)
    if q == 4:
        e.valu("v_lshlrev_b32", vfl, 7, lane); smad(sPk, sW, 64 * 128, FLAGS + F_PK * 0x8000)
acc = [[v.get(4) for t in range(5)] for n_ in range(2)]
gemm(20, 5, lambda s: [xf[0][s], xf[1][s]], acc, lambda s, t: (5 * s + t) * KB, 2, ready=ready_kv)
stamp("kv_loop")
pk_tok[0] = e.bload(pv[0:2], vfl, WS, sPk, 0, "sc1")
sWo = sg.get(); sC = sg.get(); sHalf = sg.get()
sand(sC, sJ, 7); sshr(sHalf, sJ, 3); smad(sWo, sC, 100 * KB, WO)
phik, blkk = feature_map(acc, 0, 1, 2)
stamp("k_soft")
e.barrier()
wa = v.get(); wb = v.get(); pk2 = v.get(2); tl4 = v.get(4)
e.valu("v_mul_u32_u24", wa, ROWB, vt); smul(sT[0], sW, 32 * ROWB); e.valu("v_add_u32", wa, sT[0], wa)
e.valu("v_lshl_add_u32", wb, vg, 2, wa); e.valu("v_lshl_add_u32", wa, vg, 3, wa)
for n_ in range(2):
    o = n_ * 16 * ROWB
    for h in range(2):
        e.dsw(wa, phik[n_][h][0:2], o + 96 * h); e.dsw(wa, phik[n_][h][2:4], o + 96 * h + 32); e.dsw(wa, phik[n_][h][4], o + 96 * h + 64)
        src = acc[n_][3 + h]
        cvt(pk2[0], src[0], src[1]); cvt(pk2[1], src[2], src[3])
        e.dsw(wa, pk2, o + 192 + 32 * h)
    for r in range(4): cvt(tl4[r], acc[n_][2][r], 1.0)
    setexec(0xffffffff00000000)
    for r in range(4): e.dsw(wb, tl4[r], o + 256 - 8 + 8 * r)
    setexec(-1)
v.put(blkk, pk2, tl4, acc)
e.valu("v_lshrrev_b32", t0, 2, lane); e.valu("v_mul_u32_u24", t0, ROWB, t0); e.valu("v_and_b32", t1, 3, lane); e.valu("v_lshl_add_u32", t0, t1, 3, t0)
sshr(sT[0], sW, 1); smul(sT[1], sT[0], 96); e.valu("v_add_u32", wa, sT[1], t0)
smad(sT[1], sT[0], 32, 192); sand(sT[2], sW, 1); e.scmp("s_cmp_eq_u32", sT[2], 1); ssel(sT[1], 256, sT[1]); e.valu("v_add_u32", wb, sT[1], t0)
spin(F_PK, vfl, -1, first=pk_tok[0], soff=sPk)
e.wait(lg="all"); e.barrier()
kd = [v.get(4) for _ in range(3)]
fa = [[v.get(4) for _ in range(3)] for kp in range(2)]; fb = [v.get(4) for kp in range(2)]
tk = {}
def kv_reads(kp):
    o = kp * 32 * ROWB
    e.dstr(fb[kp & 1][0:2], wb, o); e.dstr(fb[kp & 1][2:4], wb, o + 16 * ROWB)
    for m in range(3):
        e.dstr(fa[kp & 1][m][0:2], wa, o + 32 * m); tk[(kp, m)] = e.dstr(fa[kp & 1][m][2:4], wa, o + 32 * m + 16 * ROWB)
kv_reads(0)
smul(sT[1], sT[0], 10 * 256); e.scmp("s_cmp_eq_u32", sT[2], 1); ssel(sT[1], 20 * 256, sT[1])
sKv = sg.get(); smad(sKv, sJ, 8192, KVACC); sadd(sT[1], sT[1], sKv)
e.scmp("s_cmp_eq_u32", sW, 1); ssel(sEX[0], "0x33333333", -1)
e.scmp("s_cmp_eq_u32", sW, 3); ssel(sEX[0], "0xcccccccc", sEX[0]); smov(sEX[1], sEX[0])
for kp in range(4):
    e.wait(lg=tk[(kp, 2)])
    if kp < 3: kv_reads(kp + 1)
    for m in range(3): e.mfma(kd[m], fa[kp & 1][m], fb[kp & 1], 0 if kp == 0 else kd[m])
v.put(fa, fb)
dma_run(sWo, 40, 15, 40)
sTok = sg.get()
sshl(sT[0], sI, 3); sshl(sT[2], sHalf, 2); sadd(sTok, sT[0], sT[2]); sadd(sTok, sTok, sW)
vro = v.get()
e.valu("v_mul_u32_u24", vro, 1280, vt); e.valu("v_lshl_add_u32", vro, vg, 3, vro)
sRo = sg.get(); smul(sT[0], sTok, 16 * 1280); smad(sRo, sC, 160, sT[0])
xres = [v.get(2) for _ in range(5)]
for t in range(5): e.bload(xres[t], vro, XS, sRo, 32 * t)
cs = [v.get(4) for _ in range(7)]
smul(sT[0], sJ, 7 * 64); smad(sT[2], sJ, 6 * 64, 12 * 64); e.scmp("s_cmp_ge_u32", sJ, 12); ssel(sT[0], sT[2], sT[0]); sadd(sT[0], sT[0], CS1)
e.valu("v_and_b32", t0, 3, lane); e.valu("v_lshlrev_b32", t0, 13, t0); e.valu("v_lshl_add_u32", t0, vg, 4, t0)
for t in range(7): tcs = e.bload(cs[t], t0, WS, sT[0], 64 * t, "sc1")
if opt("touch", 0):
    dm = a.get(4)
    smad(sT[0], sO, 20 * KB, OP); sshl(sT[2], sJ, 10); sadd(sT[2], sT[0], sT[2]); sshl(sT[3], sJ, 8); sadd(sT[3], sT[0], sT[3]); sadd(sT[3], sT[3], 16 * KB)
    for n_ in range(2):
        e.bload(dm, l16, WS, sT[2], 0, "sc1"); e.bload(dm[0], l4, WS, sT[3], 0, "sc1"); sadd(sT[2], sT[2], 20 * KB); sadd(sT[3], sT[3], 20 * KB)
    smad(sT[0], sTok, 20 * KB, HP); sshl(sT[2], sC, 11); sadd(sT[2], sT[0], sT[2]); sshl(sT[3], sC, 9); sadd(sT[3], sT[0], sT[3]); sadd(sT[3], sT[3], 16 * KB)
    e.bload(dm, l16, WS, sT[2], 0, "sc1"); e.bload(dm, l16, WS, sT[2], KB, "sc1"); e.bload(dm[0:2], l8, WS, sT[3], 0, "sc1")
    sshl(sT[0], sTok, 10); sshl(sT[2], sC, 7); sadd(sT[0], sT[0], sT[2]); sadd(sT[0], sT[0], ST2); e.bload(dm[0], l4, WS, sT[0], 0, "sc1")
    smad(sT[0], sO, 54 * KB, H1); smul(sT[2], sJ, 3 * KB); sadd(sT[2], sT[0], sT[2]); sshl(sT[3], sJ, 9); sadd(sT[3], sT[0], sT[3]); sadd(sT[3], sT[3], 48 * KB)
    for n_ in range(2):
        for p in range(3): e.bload(dm, l16, WS, sT[2], p * KB, "sc1")
        e.bload(dm[0:2], l8, WS, sT[3], 0, "sc1"); sadd(sT[2], sT[2], 54 * KB); sadd(sT[3], sT[3], 54 * KB)
e.salu("s_mov_b64", EXEC, sEX)
for q in range(10):
    tat = e.bstore(kd[q // 4][q % 4], l4, WS, sT[1], 256 * q, op="buffer_atomic_add_f32")
setexec(-1)
v.put(kd, wa, wb)
stamp("kv_atomics")
acc = [[v.get(4) for t in range(3)] for n_ in range(2)]
gemm(20, 3, lambda s: [xf[0][s], xf[1][s]], acc, lambda s, t: QREG + (3 * s + t) * KB, 3)
a.put(xf)
stamp("q_loop")
e.wait(vm=tat); flag_wave(F_KV, "sc1")
stamp("kv_pub")
e.barrier()
dma_run(sWo, 0, 10, 0)
sW1 = sg.get(); smad(sW1, sJ, 140 * KB, W1)
tw1 = dma_run(sW1, 0, 15, 100)
phiq, blkq = feature_map(acc, 0, 1, 2)
v.put(acc)
for t in range(7):
    for r in range(4): e.valu("v_add_f32", cs[t][r], cs[t][r], cs[t][r], mods="quad_perm:[1,0,3,2] row_mask:0xf bank_mask:0xf")
for t in range(7):
    for r in range(4): e.valu("v_add_f32", cs[t][r], cs[t][r], cs[t][r], mods="quad_perm:[2,3,0,1] row_mask:0xf bank_mask:0xf")
A0 = [v.get(4) for _ in range(3)]; A1 = [v.get(4) for _ in range(3)]
for m in range(3):
    for r in range(1, 4): vmov(A1[m][r], 0)
sshl(sT[0], sJ, 7); e.valu("v_lshl_add_u32", vfl, vt, 11, sT[0]); e.valu("v_lshl_add_u32", vfl, vg, 5, vfl)
stamp("q_soft")
spin(F_KV, vfl, -1)
stamp("kv_sync")
kvr = v.get(30)
for q in range(30):
    if q == 16: sadd(sKv, sKv, 4096)
    tkv = e.bload(kvr[q], l4, WS, sKv, 256 * (q % 16), "sc1")
smad(sT[0], sO, 20 * KB, OP); sshl(sT[1], sJ, 10); sadd(sT[2], sT[0], sT[1])
sshl(sT[1], sJ, 8); sadd(sT[3], sT[0], sT[1]); sadd(sT[3], sT[3], 16 * KB)
sadd(sT[0], sT[2], 20 * KB); sadd(sT[1], sT[3], 20 * KB)
sshl(sT[4], sI, 11); sshl(sT[5], sHalf, 6); sadd(sT[4], sT[4], sT[5]); sshr(sT[5], sW, 1); sshl(sT[5], sT[5], 5); sadd(sT[4], sT[4], sT[5])
vfo = v.get(); e.valu("v_lshl_add_u32", vfo, vt, 7, sT[4])
e.wait(vm=tkv)
stamp("kv_loaded")
for m in (2, 0, 1):
    for r in range(4): cvt(A0[m][r], kvr[10 * m + 2 * r], kvr[10 * m + 2 * r + 1])
    cvt(A1[m][0], kvr[10 * m + 8], kvr[10 * m + 9])
v.put(kvr)
D0 = [[v.get(4) for h in range(2)] for n_ in range(2)]; D1 = [[v.get(4) for h in range(2)] for n_ in range(2)]
def b1(n_, h):
    r = phiq[n_][h]; return R("v", r.i + 4, 4)
for n_ in range(2):
    for h in range(2): e.mfma(D1[n_][h], A0[2], phiq[n_][h][0:4], 0)
for n_ in range(2):
    for h in range(2): e.mfma(D1[n_][h], A1[2], b1(n_, h))
for n_ in range(2):
    for h in range(2): e.mfma(D0[n_][h], A0[h], phiq[n_][h][0:4], 0)
for n_ in range(2):
    for h in range(2): e.mfma(D0[n_][h], A1[h], b1(n_, h))
v.put(A0, A1)
for n_ in range(2):
    for h in range(2):
        dn = D1[n_][h][2 * h + 1]; e.valu("v_add_f32", dn, "0x358637bd", dn)
for n_ in range(2):
    for h in range(2):
        dn = D1[n_][h][2 * h + 1]; e.valu("v_rcp_f32", dn, dn)
om = [v.get(4) for _ in range(2)]; ol = [v.get() for _ in range(2)]
for n_ in range(2):
    for h in range(2): e.valu("v_mul_f32", D1[n_][h][2 * h], D1[n_][h][2 * h], D1[n_][h][2 * h + 1])
    cvt(ol[n_], D1[n_][0][0], D1[n_][1][2])
for n_ in range(2):
    for h in range(2):
        dn = D1[n_][h][2 * h + 1]
        for r in range(4): e.valu("v_mul_f32", D0[n_][h][r], D0[n_][h][r], dn)
        cvt(om[n_][2 * h], D0[n_][h][0], D0[n_][h][1]); cvt(om[n_][2 * h + 1], D0[n_][h][2], D0[n_][h][3])
def st_o(fl):
    e.bstore(om[0], l16, WS, sT[2], 0, fl); e.bstore(ol[0], l4, WS, sT[3], 0, fl)
    e.bstore(om[1], l16, WS, sT[0], 0, fl); t = e.bstore(ol[1], l4, WS, sT[1], 0, fl)
    e.wait(vm=t); flag_wave(F_O, fl)
dual(st_o)
v.put(D0, D1, blkq, om, ol)
stamp("o_pub")
smad(sT[0], sTok, 20 * KB, OP)
spin(F_O, vfo, 0xffff); setexec(-1)
stamp("o_sync")

of = [a.get(4) for s in range(20)]
btok = {}
for s in range(16):
    if s and s % 4 == 0: sadd(sT[0], sT[0], 4 * KB)
    btok[s] = e.bload(of[s], l16, WS, sT[0], (s % 4) * KB, BL)
sadd(sT[0], sT[0], 4 * KB)
for u in range(4):
    for q in range(4): btok[16 + u] = e.bload(of[16 + u][q], l4, WS, sT[0], (4 * u + q) * 256, BL)
e.barrier()
acc = [[v.get(4) for t in range(5)]]
def bw2(s):
    e.wait(vm=btok[s])
    if s == 0: stamp("p2_b0")
gemm(20, 5, lambda s: [of[s]], acc, lambda s, t: (5 * s + t) * KB, 2, bwait=bw2)
a.put(of)
stamp("p2_loop")
hp = v.get(10, 2); s1 = v.get(2)
smad(sT[0], sTok, 20 * KB, HP); sshl(sT[1], sC, 11); sadd(sT[2], sT[0], sT[1])
sshl(sT[1], sC, 9); sadd(sT[3], sT[0], sT[1]); sadd(sT[3], sT[3], 16 * KB)
sshl(sT[0], sTok, 10); sshl(sT[1], sC, 7); sadd(sT[0], sT[0], sT[1]); sadd(sT[0], sT[0], ST2)
vmov(s1[0], 0); vmov(s1[1], 0)
for t in range(5):
    for p in range(2):
        e.valu("v_lshlrev_b32", lo, 16, xres[t][p]); e.valu("v_and_b32", hi, "0xffff0000", xres[t][p])
        e.valu("v_add_f32", lo, lo, acc[0][t][2 * p]); e.valu("v_add_f32", hi, hi, acc[0][t][2 * p + 1])
        cvt(hp[2 * t + p], lo, hi)
v.put(acc, xres)
for q in range(10): e.valu("v_dot2_f32_bf16", s1[0], hp[q], ones, s1[0])
for q in range(10): e.valu("v_dot2_f32_bf16", s1[1], hp[q], hp[q], s1[1])
e.perm("v_permlane16_swap_b32", s1[0], s1[1]); e.valu("v_add_f32", s1[0], s1[0], s1[1])
vmov(s1[1], s1[0]); e.perm("v_permlane32_swap_b32", s1[0], s1[1]); e.valu("v_add_f32", s1[0], s1[0], s1[1])
def st_h(fl):
    e.bstore(hp[0:4], l16, WS, sT[2], 0, fl); e.bstore(hp[4:8], l16, WS, sT[2], KB, fl); e.bstore(hp[8:10], l8, WS, sT[3], 0, fl)
    setexec(0xffffffff)
    t = e.bstore(s1[0], l4, WS, sT[0], 0, fl)
    e.wait(vm=t); flag_wave(F_H, fl)
dual(st_h)
stamp("h_pub")
e.barrier()
tw1 = dma_run(sW1, 60, 20, 0)
sshr(sT[0], sW, 1); sshl(sT[0], sT[0], 10); sand(sT[1], sW, 1); sshl(sT[1], sT[1], 6); sadd(sT[0], sT[0], sT[1])
sshl(sT[1], sHalf, 10); sshl(sT[2], sW, 5); sadd(sT[1], sT[1], sT[2])
e.valu("v_and_b32", t0, 8, lane); e.valu("v_lshlrev_b32", t0, 2, t0); e.valu("v_add_u32", t0, sT[0], t0); vmov(t1, sT[1])
e.valu("v_cmp_gt_u32", VCC, 16, lane); e.valu("v_cndmask_b32", t0, t1, t0)
e.valu("v_and_b32", t1, 7, lane); e.valu("v_lshl_add_u32", t0, t1, 7, t0); sshl(sT[0], sI, 11); e.valu("v_add_u32", vfl, sT[0], t0)
vst = v.get(); e.valu("v_lshlrev_b32", vst, 8, vg); e.valu("v_lshl_add_u32", vst, vt, 2, vst)
smad(sT[2], sO, KB, ST2); smad(sT[3], sTok, KB, ST2)
smad(sT[0], sO, 20 * KB, HP); sadd(sT[1], sT[0], 20 * KB)
spin(F_H, vfl, 0xffffff); setexec(-1)
stamp("h_sync")

hf = [[a.get(4) for s in range(20)] for n_ in range(2)]
btok = {}
for s in range(16):
    if s and s % 4 == 0: sadd(sT[0], sT[0], 4 * KB); sadd(sT[1], sT[1], 4 * KB)
    for n_ in range(2): btok[s] = e.bload(hf[n_][s], l16, WS, sT[n_], (s % 4) * KB, BL)
sadd(sT[0], sT[0], 4 * KB); sadd(sT[1], sT[1], 4 * KB)
for u in range(4):
    for n_ in range(2):
        for q in range(2): btok[16 + u] = e.bload(hf[n_][16 + u][2 * q:2 * q + 2], l8, WS, sT[n_], (2 * u + q) * 512, BL)
stt = [v.get(4) for _ in range(3)]
for n_ in range(3):
    for q in range(4): tst = e.bload(stt[n_][q], vst, WS, sT[2] if n_ < 2 else sT[3], (KB if n_ == 1 else 0) + 64 * q, "sc1")
stamp("p3_issued")
e.barrier()
def w1slot(s, t):
    q = 7 * s + t
    return QREG + q * KB if q < 60 else (q - 60) * KB
acc = [[v.get(4) for t in range(7)] for n_ in range(2)]
def bw3(s):
    e.wait(vm=btok[s])
    if s in (0,): stamp(f"p3_b{s}")
gemm(20, 7, lambda s: [hf[0][s], hf[1][s]], acc, w1slot, 2, bwait=bw3)
a.put(hf)
stamp("p3_loop")
e.wait(vm=tst)
for n_ in range(3):
    e.valu("v_add_f32", stt[n_][0], stt[n_][0], stt[n_][2]); e.valu("v_add_f32", stt[n_][1], stt[n_][1], stt[n_][3])
reduce4([stt[0][0], stt[1][0], stt[2][0], stt[2][1]], "v_add_f32", post=lambda r: e.valu("v_mul_f32", r, hex(0x3acccccd), r))
rstd = stt[2][1]
sW2 = sg.get(); smad(sW2, sC, 270 * KB, W2)
smad(sT[0], sO, 54 * KB, H1); smul(sT[1], sJ, 3 * KB); sadd(sT[2], sT[0], sT[1])
sshl(sT[1], sJ, 9); sadd(sT[3], sT[0], sT[1]); sadd(sT[3], sT[3], 48 * KB)
e.scmp("s_cmp_ge_u32", sJ, 12); ssel(sT[3], OOB, sT[3])
sadd(sT[0], sT[2], 54 * KB); sadd(sT[1], sT[3], 54 * KB)
ob = [v.get(14, 2) for _ in range(2)]
for n_ in range(2):
    for t in range(7):
        for r in range(4): e.valu("v_fma_f32", acc[n_][t][r], Neg(stt[n_][0]), cs[t][r], acc[n_][t][r])
        for p in range(2):
            cvt(ob[n_][2 * t + p], acc[n_][t][2 * p], acc[n_][t][2 * p + 1])
            e.valu("v_pk_max_i16", ob[n_][2 * t + p], ob[n_][2 * t + p], 0)
def st_g(fl):
    for n_ in range(2):
        for p in range(3): e.bstore(ob[n_][4 * p:4 * p + 4], l16, WS, sT[2] if n_ == 0 else sT[0], p * KB, fl)
        t = e.bstore(ob[n_][12:14], l8, WS, sT[3] if n_ == 0 else sT[1], 0, fl)
    e.wait(vm=t); flag_wave(F_H1, fl)
dual(st_g)
stamp("h1_pub")
v.put(acc, cs, ob)
e.barrier()
w2tok = {}
for q in range(8): w2tok[q] = dma_run(sW2, 20 * q, 5, 20 * q)
e.valu("v_fma_f32", rstd, Neg(stt[2][0]), stt[2][0], rstd); e.valu("v_max_f32", rstd, 0, rstd); e.valu("v_add_f32", rstd, "0x3727c5ac", rstd)
e.valu("v_rsq_f32", rstd, rstd)
smad(sT[0], sTok, 54 * KB, H1)
spin(F_H1, vfo, 0xffff); setexec(-1)
stamp("h1_sync")

gf = [a.get(4) for s in range(54)]
btok = {}
for s in range(48):
    if s and s % 4 == 0: sadd(sT[0], sT[0], 4 * KB)
    btok[s] = e.bload(gf[s], l16, WS, sT[0], (s % 4) * KB, BL)
sadd(sT[0], sT[0], 4 * KB)
for u in range(6):
    if u == 4: sadd(sT[0], sT[0], 4 * KB)
    for q in range(2): btok[48 + u] = e.bload(gf[48 + u][2 * q:2 * q + 2], l8, WS, sT[0], ((2 * u + q) % 8) * 512, BL)
e.barrier()
LA4 = 2
def ready4(s):
    if s % 4 == 0 and s // 4 >= 8:
        e.wait(vm=w2tok[s // 4]); e.barrier()
    if s % 4 == LA4 and s >= 4 + LA4:
        q = s // 4 - 1
        if q + 8 <= 13:
            e.barrier()
            w2tok[q + 8] = dma_run(sW2, 20 * (q + 8), 5, 20 * q)
acc = [[v.get(4) for t in range(5)]]
def bw4(s):
    e.wait(vm=btok[s])
    if s in (0,): stamp(f"p4_b{s}")
gemm(54, 5, lambda s: [gf[s]], acc, lambda s, t: ((5 * s + t) % 160) * KB, LA4, ready=ready4, bwait=bw4)
stamp("p4_loop")
ot = v.get(10, 2)
for t in range(5):
    for p in range(2):
        e.valu("v_lshlrev_b32", lo, 16, hp[2 * t + p]); e.valu("v_and_b32", hi, "0xffff0000", hp[2 * t + p])
        e.valu("v_fma_f32", lo, acc[0][t][2 * p], rstd, lo); e.valu("v_fma_f32", hi, acc[0][t][2 * p + 1], rstd, hi)
        cvt(ot[2 * t + p], lo, hi)
    e.bstore(ot[2 * t:2 * t + 2], vro, OS, sRo, 32 * t)
lab = "L_noep"
e.salu("s_or_b32", sT[0], S(2), sW); e.scmp("s_cmp_lg_u32", sT[0], 0); e.branch("s_cbranch_scc1", lab)
setexec(1)
e.bstore(vtag[0:2], zero, WS, 0, EPOCH, "sc1")
setexec(-1)
e.label(lab)
if DIAG:
    e.wait(vm="all"); stamp("end"); e.wait(lg="all")
    sshl(sT[0], S(2), 2); sadd(sT[0], sT[0], sW); smad(sT[0], sT[0], 128, STAMP)
    setexec(0xffffffff)
    e.bstore(vST, l4, WS, sT[0], 0)
    assert len(stamps) <= 32
    open("stamps.txt", "w").write("\n".join(stamps))
e.label("L_end")

hdr = open("cdna_kernels/%s.s.ref" % NAME).read().split("; Override launch geometry")[0]
out = hdr + f"""; @launch grid=(256,1,1) block=(256,1,1) lds=163840
.amdgcn_target "amdgcn-amd-amdhsa--gfx950"
.text
.globl {NAME}_kernel
.p2align 8
.type {NAME}_kernel,@function
{NAME}_kernel:
{e.text()}
    s_endpgm
.section .rodata,"a"
.p2align 6
.amdhsa_kernel {NAME}_kernel
  .amdhsa_next_free_vgpr 512
  .amdhsa_next_free_sgpr 102
  .amdhsa_accum_offset 256
  .amdhsa_group_segment_fixed_size 0
  .amdhsa_kernarg_size 80
  .amdhsa_user_sgpr_count 2
  .amdhsa_user_sgpr_kernarg_segment_ptr 1
  .amdhsa_system_sgpr_workgroup_id_x 1
.end_amdhsa_kernel
"""
open(sys.argv[1], "w").write(out)
print("vgpr hw", v.hw, "agpr hw", a.hw, "sgpr hw", sg.hw, "lines", len(e.L), "nops", e.nops, file=sys.stderr)
```
